```python
import torch

def _softmax(x, axis=-1):
    return torch.softmax(x, dim=axis)

def _gelu(x):
    return torch.nn.functional.gelu(x, approximate='tanh')

def _silu(x):
    return torch.nn.functional.silu(x)

def _sigmoid(x):
    return torch.sigmoid(x)

def _layernorm(x, axis=-1, eps=1e-05):
    m = x.mean(dim=axis, keepdim=True)
    v = x.var(dim=axis, keepdim=True, unbiased=False)
    return (x - m) / torch.sqrt(v + eps)

def _scatter_add(tgt, idx, src, axis=0):
    return tgt.clone().index_add_(axis, idx, src)

def _segment_sum(src, seg, n):
    out = torch.zeros((n,) + src.shape[1:], dtype=src.dtype)
    return out.index_add_(0, seg, src)

def _pad(x, pw):
    flat = tuple((v for pair in reversed(pw) for v in pair))
    return torch.nn.functional.pad(x, flat)
kernel_name = 'recurrent_scan__ssm_conv_h3__mixer_gmlp__prompt'

def setup_inputs():

    _w = lambda a: (lambda t: t.to(torch.bfloat16) if t.is_floating_point() else t)(torch.as_tensor(a))

    def _A_setup():
        B, S, D = (1, 2048, 448)
        ks = 4
        return {'q': _w((lambda *s: torch.randn(*s, dtype=torch.bfloat16) * 0.05)(B, S, D)), 'k': _w((lambda *s: torch.randn(*s, dtype=torch.bfloat16) * 0.2)(B, S, D)), 'v': _w((lambda *s: torch.randn(*s, dtype=torch.bfloat16) * 0.2)(B, S, D)), 'shift_k': _w((lambda *s: torch.randn(*s, dtype=torch.bfloat16) * 0.2)(D, ks) * 0.5), 'ssm_k': _w((lambda *s: torch.randn(*s, dtype=torch.bfloat16) * 0.2)(D, S) * (1.0 / S ** 0.5)), 'ssm_D': _w((lambda *s: torch.randn(*s, dtype=torch.bfloat16) * 0.2)(D))}
    _A_in = _A_setup()

    def _B_setup():
        B, S, D, F = (1, 2048, 448, 1792)
        Fh = F // 2
        return {'x': _w((lambda *s: torch.randn(*s, dtype=torch.bfloat16) * 0.05)(B, S, D)), 'w_in': _w((lambda *s: torch.randn(*s, dtype=torch.bfloat16) * 0.8)(D, 2 * Fh)), 'w_sp': _w(0.01 * (lambda *s: torch.randn(*s, dtype=torch.bfloat16) * 0.8)(S, S)), 'b_sp': _w(1.0 + 0.01 * (lambda *s: torch.randn(*s, dtype=torch.bfloat16) * 0.1)(S)), 'w_out': _w((lambda *s: torch.randn(*s, dtype=torch.bfloat16) * 0.1)(Fh, D))}
    _B_in = _B_setup()
    return {'A_q': _A_in['q'], 'A_k': _A_in['k'], 'A_v': _A_in['v'], 'A_shift_k': _A_in['shift_k'], 'A_ssm_k': _A_in['ssm_k'], 'A_ssm_D': _A_in['ssm_D'], 'B_x': _B_in['x'], 'B_w_in': _B_in['w_in'], 'B_w_sp': _B_in['w_sp'], 'B_b_sp': _B_in['b_sp'], 'B_w_out': _B_in['w_out']}

def reference(A_q, A_k, A_v, A_shift_k, A_ssm_k, A_ssm_D, B_x, B_w_in, B_w_sp, B_b_sp, B_w_out):

    def _A_ref(q, k, v, shift_k, ssm_k, ssm_D):
        B, S, D = q.shape
        ks = shift_k.shape[-1]
        k_pad = _pad(k, ((0, 0), (ks - 1, 0), (0, 0)))
        k_shift = torch.zeros_like(k)
        for t in range(ks):
            k_shift = k_shift + k_pad[:, t:t + S, :] * shift_k[:, ks - 1 - t][None, None, :]
        kv = k_shift * v
        L = 2 * S
        kv_pad = _pad(kv, ((0, 0), (0, S), (0, 0)))
        kf_pad = _pad(ssm_k, ((0, 0), (0, S)))
        kv_f = (lambda x, axes=(-2, -1): torch.fft.rfft2(x.float(), dim=axes))(kv_pad[:, None, :, :], axes=(1, 2))
        kf_f = (lambda x, axes=(-2, -1): torch.fft.rfft2(x.float(), dim=axes))(kf_pad[:, None, :], axes=(1, 2))
        kf_f = (lambda x, *d: x.permute(*d))(kf_f, 1, 2, 0)
        y_f = kv_f * kf_f[None, :, :, :]
        y = (lambda x, s, axes=(-2, -1): torch.fft.irfft2(x, s=s, dim=axes).to(torch.bfloat16))(y_f, (1, L), axes=(1, 2))[:, 0, :S, :]
        y = y + kv * ssm_D[None, None, :]
        return q * y

    def _B_ref(x, w_in, w_sp, b_sp, w_out):
        B, S, D = x.shape
        F = w_in.shape[-1]
        Fh = F // 2
        z = _gelu(torch.einsum('bsd,df->bsf', x, w_in))
        z1 = z[..., :Fh].clone()
        z2 = _layernorm(z[..., Fh:], axis=-1)
        g = torch.einsum('ts,bsf->btf', w_sp, z2) + b_sp[None, :, None]
        return torch.einsum('bsf,fd->bsd', z1 * g, w_out)
    x = A_q
    xn = _layernorm(x, axis=-1)
    s = _A_ref(xn, A_k, A_v, A_shift_k, A_ssm_k, A_ssm_D)
    g = _silu(_B_ref(xn, B_w_in, B_w_sp, B_b_sp, B_w_out))
    return x + s * g
```

```python
HEADER = """; Kernarg layout for this problem (112 bytes, ptrs only, base s[0:1]):
"""

KA = dict(q=0, k=8, v=16, shift_k=24, ssm_k=32, ssm_D=40, x_unused=48, w_in=56, w_sp=64, b_sp=72,
          w_out=80, out=88, dbg=96, ws=104)
NBYTES = dict(q=2048*448*2, k=2048*448*2, v=2048*448*2, shift_k=448*4*2, ssm_k=448*2048*2, ssm_D=448*2,
              w_in=448*1792*2, w_sp=2048*2048*2, b_sp=2048*2, w_out=896*448*2, out=2048*448*2, dbg=256)

WS = {}
_off = 0
def _ws(name, n):
    global _off
    WS[name] = (_off, n)
    _off += (n + 4095) // 4096 * 4096
_ws('Z2F', 2048*896*2)
_ws('Z1F', 2048*896*2)
_ws('PF', 2048*896*2)
_ws('WOF', 896*448*2)
_ws('KVT', 448*2048*2)
_ws('Y2T', 448*2048*2)
_ws('ST1', 2048*8)
_ws('PART', 16*4*28*512 + 4096)


class Kern:
    def __init__(self, name):
        self.name = name
        self.lines = []
        self.nlabel = 0
    def __call__(self, s):
        for l in s.split('\n'):
            l = l.strip()
            if l:
                self.lines.append('    ' + l if not l.endswith(':') else l)
    def label(self, base='L'):
        self.nlabel += 1
        return f'{self.name}_{base}{self.nlabel}'
    def srd(self, d, ptr_lo, nbytes, off=0):
        if off:
            self(f's_add_u32 s{d}, s{ptr_lo}, {off}')
            self(f's_addc_u32 s{d+1}, s{ptr_lo+1}, 0')
        else:
            self(f's_mov_b32 s{d}, s{ptr_lo}')
            self(f's_mov_b32 s{d+1}, s{ptr_lo+1}')
        self(f's_mov_b32 s{d+2}, {nbytes}')
        self(f's_mov_b32 s{d+3}, 0x00020000')
    def text(self, vgpr, sgpr=102, accum=None):
        if accum is None:
            accum = (vgpr + 3) // 4 * 4
        t = f'.text\n.globl {self.name}\n.p2align 8\n.type {self.name},@function\n{self.name}:\n'
        t += '\n'.join(self.lines) + '\n'
        t += f'''.section .rodata,"a"
.p2align 6
.amdhsa_kernel {self.name}
  .amdhsa_next_free_vgpr {vgpr}
  .amdhsa_next_free_sgpr {sgpr}
  .amdhsa_accum_offset {accum}
  .amdhsa_group_segment_fixed_size 0
  .amdhsa_kernarg_size 112
  .amdhsa_user_sgpr_count 2
  .amdhsa_user_sgpr_kernarg_segment_ptr 1
  .amdhsa_system_sgpr_workgroup_id_x 1
  .amdhsa_float_denorm_mode_32 3
.end_amdhsa_kernel
'''
        return t


def build_file(path, launches, kernels_text):
    s = HEADER
    for (n, g, b, l) in launches:
        s += f'; @launch kernel={n} grid=({g},1,1) block=({b},1,1) lds={l}\n'
    s += '.amdgcn_target "amdgcn-amd-amdhsa--gfx950"\n'
    s += ''.join(kernels_text)
    s += '.text\ncode_end:\n'
    open(path, 'w').write(s)

def vr(a, n):
    return f'v[{a}:{a+n-1}]' if n > 1 else f'v{a}'
def sr(a, n):
    return f's[{a}:{a+n-1}]' if n > 1 else f's{a}'

_ws('FLG', 8192)
_ws('TS', 64*2048*64)

def stamp_begin(k, s0=90):
    k(f's_memrealtime s[{s0}:{s0+1}]')
    k(f's_memtime s[{s0+2}:{s0+3}]')
def stamp_end(k, kidx, ws_lo, wave_s, s0=90, vtmp=0, extra=()):
    k('s_waitcnt vmcnt(0) lgkmcnt(0)')
    k(f's_memrealtime s[{s0+4}:{s0+5}]')
    k(f's_memtime s[{s0+6}:{s0+7}]')
    k('s_waitcnt lgkmcnt(0)')
    k(f'v_mov_b32 v{vtmp}, s{s0}')
    k(f'v_mov_b32 v{vtmp+1}, s{s0+4}')
    k(f'v_mov_b32 v{vtmp+2}, s{s0+2}')
    k(f'v_mov_b32 v{vtmp+3}, s{s0+6}')
    k.srd(s0+6 if (s0+6) % 4 == 0 else s0+4+((4-(s0+4)%4)%4), ws_lo, WS['TS'][1], WS['TS'][0])
    d = s0+6 if (s0+6) % 4 == 0 else s0+4+((4-(s0+4)%4)%4)
    k(f's_lshl_b32 s{s0}, s2, 4')
    k(f's_add_u32 s{s0}, s{s0}, s{wave_s}')
    k(f's_lshl_b32 s{s0}, s{s0}, 6')
    k(f's_add_u32 s{s0}, s{s0}, {kidx*4096*64}')
    k(f'v_mov_b32 v{vtmp+4}, 0')
    k('s_mov_b64 exec, 1')
    k(f'buffer_store_dwordx4 v[{vtmp}:{vtmp+3}], v{vtmp+4}, s[{d}:{d+3}], s{s0} offen')
    for i, e in enumerate(extra):
        k(f'v_mov_b32 v{vtmp+5}, s{e}')
        k(f'buffer_store_dword v{vtmp+5}, v{vtmp+4}, s[{d}:{d+3}], s{s0} offen offset:{16+4*i}')
        k('s_nop 1')
    k('s_waitcnt vmcnt(0)')
```

```python
from asmlib import *
import struct
def f32(x): return '0x%08x' % struct.unpack('<I', struct.pack('<f', x))[0]
EPOCH_OFF = 16*4*28*512
K1_LDS = 131072 + 8192 + 2048
SPIN_MAX = 1 << 16

def round_bf16_single(k, dst, src):
    k(f'v_cvt_pk_bf16_f32 v{dst}, v{src}, v{src}')
    k(f'v_lshlrev_b32 v{dst}, 16, v{dst}')

def ln_stats(k, S1, S2, n, MB, RS, T):
    k(f'v_mul_f32 v{MB}, {f32(1.0/n)}, v{S1}')
    k(f'v_mul_f32 v{T}, {f32(1.0/n)}, v{S2}')
    k(f'v_fma_f32 v{T}, -v{MB}, v{MB}, v{T}')
    k(f'v_max_f32 v{T}, 0, v{T}')
    round_bf16_single(k, T, T)
    k(f'v_add_f32 v{T}, {f32(1e-5)}, v{T}')
    round_bf16_single(k, T, T)
    k(f'v_sqrt_f32 v{T}, v{T}')
    round_bf16_single(k, MB, MB)
    round_bf16_single(k, T, T)
    k(f'v_rcp_f32 v{RS}, v{T}')
    k('s_nop 0')

def gen_k1(name='k1_kernel', kidx=None):
    k = Kern(name)
    stamps = []
    def stamp(i):
        if kidx is not None:
            k(f's_memtime s[{80+2*i}:{81+2*i}]')
            k('s_waitcnt lgkmcnt(0)')
            stamps.append(80+2*i)
    if kidx is not None: stamp_begin(k)
    k('s_cmp_ge_u32 s2, 256')
    k(f's_cbranch_scc1 {name}_end')
    k('s_load_dwordx8 s[64:71], s[0:1], 0')
    k(f's_load_dwordx2 s[72:73], s[0:1], {KA["w_in"]}')
    k(f's_load_dwordx2 s[74:75], s[0:1], {KA["w_out"]}')
    k(f's_load_dwordx4 s[76:79], s[0:1], {KA["dbg"]}')
    k('''v_lshrrev_b32 v1, 6, v0
    v_and_b32 v2, 31, v0             ; l%32
    v_readfirstlane_b32 s30, v1      ; wave
    v_and_b32 v1, 63, v0             ; lane
    v_lshrrev_b32 v3, 5, v1          ; hi
    s_and_b32 s31, s30, 3            ; sg
    s_lshr_b32 s32, s30, 2           ; fg
    s_and_b32 s35, s2, 7             ; xcd
    s_lshr_b32 s3, s2, 3             ; j
    s_waitcnt lgkmcnt(0)
    s_mov_b32 s28, s78
    s_mov_b32 s29, s79
    s_cmp_ge_u32 s3, 28
    ''')
    k(f's_cbranch_scc1 {name}_aux')
    k('''s_cmp_ge_u32 s3, 14
    s_cselect_b32 s33, 1, 0
    s_mul_i32 s34, s33, 14
    s_sub_u32 s34, s3, s34           ; cb
    s_lshl_b32 s35, s35, 1
    s_add_u32 s33, s33, s35          ; rb
    ''')
    k.srd(8, 64, NBYTES['q'])
    k.srd(12, 72, NBYTES['w_in'])
    k.srd(36, 66, NBYTES['k'])
    k.srd(40, 68, NBYTES['v'])
    k.srd(48, 70, NBYTES['shift_k'])
    k.srd(44, 28, WS['KVT'][1], WS['KVT'][0])
    seq = []
    def issue(tag, lines, n):
        for l in lines: k(l)
        seq.append((tag, n))
    def wait_for(tag):
        idx = max(i for i, (t, n) in enumerate(seq) if t == tag)
        k(f's_waitcnt vmcnt({sum(n for t, n in seq[idx+1:])})')
    KV = 64
    k('''s_mul_i32 s60, s33, 14
    s_add_u32 s60, s60, s34          ; u
    s_mul_i32 s61, s60, 9363
    s_lshr_b32 s61, s61, 16          ; sb
    s_mul_i32 s62, s61, 7
    s_sub_u32 s62, s60, s62          ; dbk
    s_lshl_b32 s63, s61, 6
    s_lshl_b32 s60, s30, 3
    s_add_u32 s63, s63, s60          ; s0
    s_mul_i32 s63, s63, 896
    s_lshl_b32 s60, s62, 7
    s_add_u32 s63, s63, s60          ; base B
    s_add_u32 s60, s63, 4480         ; base C
    s_sub_u32 s4, s63, 2688
    v_lshlrev_b32 v28, 1, v1         ; 2l
    v_add_u32 v29, s4, v28
    v_lshlrev_b32 v30, 3, v1
    s_lshl_b32 s5, s62, 9            ; dbk*64*8
    ''')
    L = []
    for j in range(3): L.append(f'buffer_load_ushort v{KV+j}, v29, s[36:39], 0 offen offset:{j*896}')
    for j in range(8):
        so, im = ('s63', j*896) if j < 5 else ('s60', (j-5)*896)
        L.append(f'buffer_load_ushort v{KV+3+j}, v28, s[36:39], {so} offen offset:{im}')
    for j in range(8):
        so, im = ('s63', j*896) if j < 5 else ('s60', (j-5)*896)
        L.append(f'buffer_load_ushort v{KV+11+j}, v28, s[40:43], {so} offen offset:{im}')
    L.append('buffer_load_dwordx2 v[84:85], v30, s[48:51], s5 offen')
    issue('KV', L, 20)
    k('''v_lshrrev_b32 v28, 3, v1         ; l/8
    v_lshrrev_b32 v29, 4, v1         ; l>>4
    v_xor_b32 v30, v29, v1
    v_and_b32 v30, 7, v30            ; x chunk (h=0)
    v_mul_u32_u24 v4, 896, v28
    v_lshl_add_u32 v4, v30, 4, v4
    v_xor_b32 v30, 4, v30
    v_mul_u32_u24 v5, 896, v28
    v_lshl_add_u32 v5, v30, 4, v5
    v_add_u32 v5, 7168, v5
    v_and_b32 v29, 1, v29
    v_lshlrev_b32 v29, 2, v29
    v_xor_b32 v30, v29, v1
    v_and_b32 v30, 7, v30            ; w chunk
    v_mul_u32_u24 v6, 3584, v28
    v_lshl_add_u32 v6, v30, 4, v6
    v_add_u32 v7, 28672, v6
    s_lshl_b32 s4, s33, 7
    s_lshl_b32 s5, s30, 4
    s_add_u32 s4, s4, s5
    s_mul_i32 s6, s4, 896
    s_mul_i32 s7, s31, 57344         ; 16*sg*3584
    s_lshl_b32 s4, s34, 7
    s_add_u32 s7, s7, s4
    s_cmp_eq_u32 s32, 0
    s_cselect_b32 s4, 1792, 0
    s_add_u32 s7, s7, s4
    s_lshl_b32 s35, s30, 11          ; w*2048
    ''')
    def dma(st):
        slot = st % 4
        o = []
        o.append(f's_add_u32 s4, s6, {128*st}')
        o.append(f's_add_u32 s5, s7, {64*3584*st}')
        for h in range(2):
            o.append(f's_add_u32 m0, s35, {slot*32768 + h*1024}')
            o.append('s_nop 0')
            o.append(f'buffer_load_dwordx4 v{4+h}, s[8:11], s4 offen lds')
            o.append(f's_add_u32 m0, s35, {slot*32768 + 16384 + h*1024}')
            o.append('s_nop 0')
            o.append(f'buffer_load_dwordx4 v{6+h}, s[12:15], s5 offen lds')
        return o
    issue('D0', dma(0), 4); issue('D1', dma(1), 4)
    k('''s_xor_b32 s4, s31, s32
    v_lshrrev_b32 v28, 1, v2
    v_and_b32 v28, 7, v28            ; f(row)
    v_xor_b32 v28, v28, v3           ; ^hi
    v_lshlrev_b32 v28, 4, v28
    v_lshl_add_u32 v28, v2, 7, v28
    s_lshl_b32 s5, s31, 12           ; sg*32*128
    v_add_u32 v28, s5, v28
    v_bfe_u32 v29, v1, 2, 2          ; r
    v_lshl_add_u32 v30, v3, 3, v29   ; 8kg + r
    v_lshlrev_b32 v30, 7, v30
    v_and_b32 v31, 3, v1
    v_lshlrev_b32 v31, 3, v31        ; 8c
    v_bfe_u32 v24, v1, 4, 1
    v_lshl_add_u32 v31, v24, 5, v31  ; + 32 fhalf
    s_lshl_b32 s5, s32, 6
    v_add_u32 v31, s5, v31           ; + 64 fg
    v_lshrrev_b32 v29, 1, v29
    v_lshlrev_b32 v29, 6, v29
    v_xor_b32 v31, v31, v29
    v_add_u32 v30, v30, v31
    v_add_u32 v30, 0x4000, v30
    ''')
    for ks in range(4):
        k(f's_xor_b32 s5, s4, {ks}')
        k(f's_lshl_b32 s60, s5, 5')
        k(f'v_xor_b32 v{8+ks}, s60, v28')
        k(f'v_add_u32 v{12+ks}, 0x10000, v{8+ks}')
        k(f's_lshl_b32 s60, s5, 11')
        k(f'v_add_u32 v{16+ks}, s60, v30')
        k(f'v_add_u32 v{20+ks}, 0x10000, v{16+ks}')
    wait_for('KV')
    k('s_mov_b32 s60, 0xffff0000')
    for j in range(19): k(f'v_lshlrev_b32 v{KV+j}, 16, v{KV+j}')
    k('''v_lshlrev_b32 v86, 16, v84
    v_and_b32 v87, s60, v84
    v_lshlrev_b32 v88, 16, v85
    v_and_b32 v89, s60, v85
    ''')
    for pr in range(4):
        s0 = 2*pr
        a0, a1, p0, p1, t = 90, 91, 92, 93, 94
        for tap in range(4):
            d0, d1 = (a0, a1) if tap == 0 else (p0, p1)
            k(f'v_mul_f32 v{d0}, v{KV+s0+tap}, v{89-tap}')
            k(f'v_mul_f32 v{d1}, v{KV+s0+1+tap}, v{89-tap}')
            k(f'v_cvt_pk_bf16_f32 v{t}, v{d0}, v{d1}')
            k(f'v_lshlrev_b32 v{d0}, 16, v{t}')
            k(f'v_and_b32 v{d1}, s60, v{t}')
            if tap:
                k(f'v_add_f32 v{a0}, v{a0}, v{p0}')
                k(f'v_add_f32 v{a1}, v{a1}, v{p1}')
                k(f'v_cvt_pk_bf16_f32 v{t}, v{a0}, v{a1}')
                k(f'v_lshlrev_b32 v{a0}, 16, v{t}')
                k(f'v_and_b32 v{a1}, s60, v{t}')
        k(f'v_mul_f32 v{a0}, v{a0}, v{KV+11+s0}')
        k(f'v_mul_f32 v{a1}, v{a1}, v{KV+11+s0+1}')
        k(f'v_cvt_pk_bf16_f32 v{96+pr}, v{a0}, v{a1}')
        if pr == 1: issue('D2', dma(2), 4)
    k('''v_lshlrev_b32 v28, 12, v1
    s_lshl_b32 s4, s62, 18
    s_lshl_b32 s5, s30, 9
    s_add_u32 s4, s4, s5
    s_lshl_b32 s5, s61, 4
    s_add_u32 s4, s4, s5
    ''')
    issue('KVS', ['buffer_store_dwordx4 v[96:99], v28, s[44:47], s4 offen'], 1)
    issue('D3', dma(3), 4)
    k.srd(56, 76, 256)
    k('''v_mov_b32 v24, 0
    v_mov_b32 v25, 0
    v_mov_b32 v26, 0
    v_mov_b32 v27, 0
    s_mov_b32 s61, 0x3f803f80
    v_mov_b32 v31, 0
    ''')
    stamp(0)
    ACC = 32; FR = 64
    def xf(ks): return FR + ks*12
    def wf(ks, p): return FR + ks*12 + 4 + p*4
    for st in range(7):
        slot = st % 4
        hs, so = slot // 2, (slot % 2) * 32768
        wait_for(f'D{st}')
        k('s_barrier')
        if st >= 1 and st + 3 < 7:
            issue(f'D{st+3}', dma(st+3), 4)
        if st == 4:
            issue('EP', ['buffer_load_dword v30, v31, s[56:59], 0 offen sc1'], 1)
        def reads(ks):
            k(f'ds_read_b128 {vr(xf(ks),4)}, v{8+4*hs+ks} offset:{so}')
            for p in range(2):
                for e2 in range(2):
                    k(f'ds_read_b64_tr_b16 {vr(wf(ks,p)+2*e2,2)}, v{16+4*hs+ks} offset:{so + p*8192 + e2*512}')
        reads(0); reads(1)
        for ks in range(4):
            if ks + 2 < 4:
                reads(ks+2); k('s_waitcnt lgkmcnt(10)')
            else:
                k(f's_waitcnt lgkmcnt({5 if ks == 2 else 0})')
            for p in range(2):
                c = '0' if (st == 0 and ks == 0) else vr(ACC+16*p, 16)
                k(f'v_mfma_f32_32x32x16_bf16 {vr(ACC+16*p,16)}, {vr(wf(ks,p),4)}, {vr(xf(ks),4)}, {c}')
                if ks == 0:
                    for d in range(4): k(f'v_dot2c_f32_bf16 v{26+p}, s61, v{wf(ks,p)+d}')
                if ks in (0, 2):
                    for d in range(2*p, 2*p+2):
                        k(f'v_dot2c_f32_bf16 v24, s61, v{xf(ks)+d}')
                        k(f'v_dot2c_f32_bf16 v25, v{xf(ks)+d}, v{xf(ks)+d}')
    stamp(1)
    XS = 131072; CS = XS + 4096; CSF = CS + 4096
    k(f'''; XS[row][fg][hi] 8B
    s_lshl_b32 s4, s31, 10           ; sg*32*32
    s_lshl_b32 s5, s32, 4
    s_add_u32 s5, s5, s4
    s_add_u32 s5, s5, {XS}
    v_lshlrev_b32 v28, 5, v2
    v_lshl_add_u32 v29, v3, 3, v28
    v_add_u32 v29, s5, v29
    s_nop 1
    ds_write_b64 v29, v[24:25]
    s_add_u32 s4, s4, {XS}
    v_add_u32 v28, s4, v28
    s_lshl_b32 s4, s32, 10
    s_lshl_b32 s5, s31, 3
    s_add_u32 s5, s5, s4
    s_add_u32 s5, s5, {CS}
    v_lshlrev_b32 v29, 5, v2
    v_lshl_add_u32 v64, v3, 2, v29
    v_add_u32 v64, s5, v64
    ds_write_b32 v64, v26
    ds_write_b32 v64, v27 offset:2048
    ; CS read addr: p = hi, f = l%32
    v_lshl_add_u32 v29, v3, 11, v29
    s_add_u32 s4, s4, {CS}
    v_add_u32 v29, s4, v29
    s_waitcnt lgkmcnt(0)
    s_barrier
    ds_read_b128 v[64:67], v28
    ds_read_b128 v[68:71], v28 offset:16
    ds_read_b128 v[72:75], v29
    ds_read_b128 v[76:79], v29 offset:16
    s_lshl_b32 s4, s30, 8
    s_add_u32 s4, s4, {CSF}
    v_lshlrev_b32 v28, 2, v1
    v_add_u32 v28, s4, v28
    v_lshlrev_b32 v29, 4, v3
    v_add_u32 v29, s4, v29
    s_waitcnt lgkmcnt(0)
    v_add_f32 v72, v72, v73
    v_add_f32 v74, v74, v75
    v_add_f32 v76, v76, v77
    v_add_f32 v78, v78, v79
    v_add_f32 v72, v72, v74
    v_add_f32 v76, v76, v78
    v_add_f32 v72, v72, v76
    ds_write_b32 v28, v72
    v_add_f32 v64, v64, v66
    v_add_f32 v65, v65, v67
    v_add_f32 v68, v68, v70
    v_add_f32 v69, v69, v71
    v_add_f32 v64, v64, v68
    v_add_f32 v65, v65, v69
    s_waitcnt lgkmcnt(0)
    ''')
    CSR = 80
    for p in range(2):
        for j in range(4):
            k(f'ds_read_b128 {vr(CSR+16*p+4*j,4)}, v29 offset:{p*128 + j*32}')
    MB, RS = 24, 25
    ln_stats(k, 64, 65, 448, MB, RS, 66)
    lab = k.label('nost')
    k('s_or_b32 s4, s34, s32')
    k('s_cmp_lg_u32 s4, 0')
    k(f's_cbranch_scc1 {lab}')
    k.srd(52, 28, WS['ST1'][1], WS['ST1'][0])
    k('''s_lshl_b32 s4, s33, 10
    s_lshl_b32 s5, s31, 8
    s_add_u32 s4, s4, s5
    v_lshlrev_b32 v28, 3, v2
    s_mov_b32 exec_hi, 0
    buffer_store_dwordx2 v[24:25], v28, s[52:55], s4 offen
    s_mov_b64 exec, -1
    ''')
    k(f'{lab}:')
    c1 = -2*0.7978845608028654*1.4426950408889634
    k(f's_mov_b32 s62, {f32(c1)}')
    k(f'v_mov_b32 v26, {f32(c1*0.044715)}')
    k('s_waitcnt lgkmcnt(0)')
    def gelu_tile(p, outregs, do_stats):
        for i in range(8):
            a0, a1 = ACC+16*p+2*i, ACC+16*p+2*i+1
            c0, c1_ = CSR+16*p+2*i, CSR+16*p+2*i+1
            t = 66
            k(f'v_fma_f32 v{a0}, -v{MB}, v{c0}, v{a0}')
            k(f'v_fma_f32 v{a1}, -v{MB}, v{c1_}, v{a1}')
            k(f'v_mul_f32 v{a0}, v{a0}, v{RS}')
            k(f'v_mul_f32 v{a1}, v{a1}, v{RS}')
            k(f'v_cvt_pk_bf16_f32 v{t}, v{a0}, v{a1}')
            k(f'v_lshlrev_b32 v{a0}, 16, v{t}')
            k(f'v_and_b32 v{a1}, s60, v{t}')
            k(f'v_mul_f32 v{c0}, v{a0}, v{a0}')
            k(f'v_mul_f32 v{c1_}, v{a1}, v{a1}')
            k(f'v_fma_f32 v{c0}, v{c0}, v26, s62')
            k(f'v_fma_f32 v{c1_}, v{c1_}, v26, s62')
            k(f'v_mul_f32 v{c0}, v{c0}, v{a0}')
            k(f'v_mul_f32 v{c1_}, v{c1_}, v{a1}')
            k(f'v_exp_f32 v{c0}, v{c0}')
            k(f'v_exp_f32 v{c1_}, v{c1_}')
            k('s_nop 0')
            k(f'v_add_f32 v{c0}, 1.0, v{c0}')
            k(f'v_add_f32 v{c1_}, 1.0, v{c1_}')
            k(f'v_rcp_f32 v{c0}, v{c0}')
            k(f'v_rcp_f32 v{c1_}, v{c1_}')
            k('s_nop 0')
            k(f'v_mul_f32 v{a0}, v{a0}, v{c0}')
            k(f'v_mul_f32 v{a1}, v{a1}, v{c1_}')
            k(f'v_cvt_pk_bf16_f32 v{outregs[i]}, v{a0}, v{a1}')
            if do_stats:
                k(f'v_dot2c_f32_bf16 v68, s61, v{outregs[i]}')
                k(f'v_dot2c_f32_bf16 v69, v{outregs[i]}, v{outregs[i]}')
    Z2R = 112
    k('v_mov_b32 v68, 0')
    k('v_mov_b32 v69, 0')
    gelu_tile(0, [Z2R+i for i in range(8)], True)
    k.srd(24, 28, WS['PART'][1], WS['PART'][0])
    k('s_nop 2')
    k('v_permlane32_swap_b32 v68, v69')
    wait_for('EP')
    lp, ok = k.label('eppoll'), k.label('epok')
    k(f's_mov_b32 s5, {SPIN_MAX}')
    k(f'{lp}:')
    k('v_readfirstlane_b32 s63, v30')
    k('s_cmp_lg_u32 s63, 0')
    k(f's_cbranch_scc1 {ok}')
    k('s_sub_u32 s5, s5, 1')
    k('s_cmp_eq_u32 s5, 0')
    k(f's_cbranch_scc1 {ok}')
    k('s_sleep 2')
    k('buffer_load_dword v30, v31, s[56:59], 0 offen sc1')
    k('s_waitcnt vmcnt(0)')
    k(f's_branch {lp}')
    k(f'{ok}:')
    k('s_mov_b32 s74, s5')
    k('''v_add_f32 v68, v68, v69
    v_mov_b32 v69, s63
    s_lshl_b32 s4, s33, 2
    s_add_u32 s4, s4, s31
    s_mul_i32 s52, s4, 14336         ; (rb*4+sg)*28*512
    s_lshl_b32 s4, s34, 1
    s_add_u32 s4, s4, s32
    s_lshl_b32 s4, s4, 9
    s_add_u32 s4, s4, s52
    v_lshlrev_b32 v29, 3, v1
    buffer_store_dwordx2 v[68:69], v29, s[24:27], s4 offen sc1
    ''')
    stamp(2)
    Z1R = 120
    om = {0: 0, 1: 1, 4: 2, 5: 3, 2: 4, 3: 5, 6: 6, 7: 7}
    gelu_tile(1, [Z1R+om[i] for i in range(8)], False)
    k.srd(16, 28, WS['Z1F'][1], WS['Z1F'][0])
    k('''; voffset = (l%32/16)*28672 + (hi*16 + l%16)*16 ; soffset = (8rb+2sg)*28672 + (2cb+fg)*1024
    v_bfe_u32 v28, v1, 4, 1
    v_mul_u32_u24 v28, 28672, v28
    v_and_b32 v64, 15, v1
    v_lshl_add_u32 v64, v3, 4, v64
    v_lshl_add_u32 v28, v64, 4, v28
    s_lshl_b32 s4, s33, 2
    s_add_u32 s4, s4, s31
    s_mul_i32 s4, s4, 57344
    s_lshl_b32 s5, s34, 1
    s_add_u32 s5, s5, s32
    s_lshl_b32 s5, s5, 10
    s_add_u32 s4, s4, s5
    buffer_store_dwordx4 v[120:123], v28, s[16:19], s4 offen
    buffer_store_dwordx4 v[124:127], v28, s[16:19], s4 offen offset:512
    ''')
    stamp(3)
    G = 128
    lp, ok, full = k.label('stpoll'), k.label('stok'), k.label('stfull')
    k(f's_mov_b32 s5, {SPIN_MAX}')
    for i in range(4): k(f's_add_u32 s{36+i}, s52, {4096*i}')
    k('v_min_u32 v28, 27, v1')
    k('v_lshlrev_b32 v28, 9, v28')
    k(f'{lp}:')
    k('buffer_load_dword v64, v28, s[24:27], s52 offen offset:4 sc1')
    k('s_sub_u32 s5, s5, 1')
    k('s_waitcnt vmcnt(0)')
    k('v_cmp_ne_u32 vcc, v64, v69')
    k('s_cmp_eq_u32 s5, 0')
    k(f's_cbranch_scc1 {full}')
    k('s_nop 2')
    k(f's_cbranch_vccz {full}')
    k('s_sleep 1')
    k(f's_branch {lp}')
    k(f'{full}:')
    for i in range(28):
        k(f'buffer_load_dwordx2 {vr(G+2*i,2)}, v29, s[24:27], s{36+i//8} offen offset:{(i%8)*512} sc1')
    k('s_waitcnt vmcnt(0)')
    k(f'v_max3_u32 v64, v{G+1}, v{G+3}, v69')
    k(f'v_min3_u32 v65, v{G+1}, v{G+3}, v69')
    for i in range(1, 14):
        k(f'v_max3_u32 v64, v{G+4*i+1}, v{G+4*i+3}, v64')
        k(f'v_min3_u32 v65, v{G+4*i+1}, v{G+4*i+3}, v65')
    k('v_cmp_ne_u32 vcc, v64, v65')
    k('s_cmp_eq_u32 s5, 0')
    k(f's_cbranch_scc1 {ok}')
    k('s_nop 2')
    k(f's_cbranch_vccnz {lp}')
    k(f'{ok}:')
    k('s_mov_b32 s75, s5')
    stamp(4)
    idx = [G+2*i for i in range(28)]
    while len(idx) > 1:
        nxt = []
        for i in range(0, len(idx)-1, 2):
            k(f'v_add_f32 v{idx[i]}, v{idx[i]}, v{idx[i+1]}')
            nxt.append(idx[i])
        if len(idx) % 2: nxt.append(idx[-1])
        idx = nxt
    k(f'v_mov_b32 v64, v{G}')
    k(f'v_mov_b32 v65, v{G}')
    k('s_nop 1')
    k('v_permlane32_swap_b32 v64, v65')
    k('s_nop 1')
    ln_stats(k, 64, 65, 896, MB, RS, 66)
    k('''v_mul_u32_u24 v28, 72, v2
    v_lshl_add_u32 v28, v3, 3, v28
    s_lshl_b32 s4, s30, 12
    v_add_u32 v28, s4, v28
    ''')
    for i in range(8):
        z = Z2R + i
        k(f'v_lshlrev_b32 v64, 16, v{z}')
        k(f'v_and_b32 v65, s60, v{z}')
        k(f'v_sub_f32 v64, v64, v{MB}')
        k(f'v_sub_f32 v65, v65, v{MB}')
        k(f'v_cvt_pk_bf16_f32 v66, v64, v65')
        k(f'v_lshlrev_b32 v64, 16, v66')
        k(f'v_and_b32 v65, s60, v66')
        k(f'v_mul_f32 v64, v64, v{RS}')
        k(f'v_mul_f32 v65, v65, v{RS}')
        k(f'v_cvt_pk_bf16_f32 v{z}, v64, v65')
        if i % 2: k(f'ds_write_b64 v28, {vr(z-1,2)} offset:{(i//2)*16}')
    k.srd(20, 28, WS['Z2F'][1], WS['Z2F'][0])
    k('''; tr read addr: (8kg + r)*72 + 8c ; kg = l/16, r=(l%16)/4, c = l%4
    v_lshrrev_b32 v64, 4, v1
    v_bfe_u32 v65, v1, 2, 2
    v_lshl_add_u32 v64, v64, 3, v65
    v_mul_u32_u24 v64, 72, v64
    v_and_b32 v65, 3, v1
    v_lshl_add_u32 v64, v65, 3, v64
    v_add_u32 v64, s4, v64
    v_lshlrev_b32 v65, 4, v1
    s_lshl_b32 s4, s33, 2
    s_add_u32 s4, s4, s31
    s_mul_i32 s4, s4, 57344          ; ks*56*1024
    s_lshl_b32 s5, s34, 1
    s_add_u32 s5, s5, s32
    s_lshl_b32 s5, s5, 11
    s_add_u32 s4, s4, s5
    s_waitcnt lgkmcnt(0)
    ds_read_b64_tr_b16 v[68:69], v64
    ds_read_b64_tr_b16 v[70:71], v64 offset:288
    ds_read_b64_tr_b16 v[72:73], v64 offset:32
    ds_read_b64_tr_b16 v[74:75], v64 offset:320
    s_waitcnt lgkmcnt(2)
    buffer_store_dwordx4 v[68:71], v65, s[20:23], s4 offen
    s_waitcnt lgkmcnt(0)
    buffer_store_dwordx4 v[72:75], v65, s[20:23], s4 offen offset:1024
    ''')
    if kidx is not None: stamp_end(k, kidx, 28, 30, extra=stamps+[74,75,63])
    k('s_endpgm')
    k(f'{name}_aux:')
    k('''s_sub_u32 s3, s3, 28
    s_lshl_b32 s35, s35, 2
    s_add_u32 s33, s35, s3           ; a = xcd*4 + (j-28)
    s_cmp_ge_u32 s33, 28
    ''')
    k(f's_cbranch_scc1 {name}_aux2')
    k.srd(8, 74, NBYTES['w_out'])
    k.srd(12, 28, WS['WOF'][1], WS['WOF'][0])
    k('''v_lshlrev_b32 v4, 4, v1
    s_mul_i32 s4, s33, 28672
    s_lshl_b32 s5, s30, 10
    s_add_u32 s4, s4, s5
    ''')
    la = k.label('a1')
    for i in range(4):
        if i == 3:
            k('s_cmp_ge_u32 s30, 4')
            k(f's_cbranch_scc1 {la}')
        k(f's_add_u32 m0, s5, {i*8192}')
        k(f's_add_u32 s6, s4, {i*8192}')
        k('buffer_load_dwordx4 v4, s[8:11], s6 offen lds')
    k(f'{la}:')
    k('''; tr addr: row (4g + r) * 896 + (16dt + 4c)*2 ; l/4 = 4g + r
    v_lshrrev_b32 v5, 2, v1
    v_mul_u32_u24 v5, 896, v5
    v_and_b32 v6, 3, v1
    v_lshl_add_u32 v5, v6, 3, v5
    s_lshl_b32 s6, s30, 5
    v_add_u32 v5, s6, v5             ; dt = w + 8i
    s_mul_i32 s6, s30, 28672
    s_lshl_b32 s7, s33, 10
    s_add_u32 s6, s6, s7
    s_waitcnt vmcnt(0)
    s_barrier
    ''')
    la = k.label('a2')
    for i in range(4):
        if i == 3:
            k('s_cmp_ge_u32 s30, 4')
            k(f's_cbranch_scc1 {la}')
        k(f'ds_read_b64_tr_b16 v[{8+4*i}:{9+4*i}], v5 offset:{i*256}')
        k(f'ds_read_b64_tr_b16 v[{10+4*i}:{11+4*i}], v5 offset:{i*256 + 16*896}')
        k(f's_add_u32 s7, s6, {i*8*28672}')
        k('s_waitcnt lgkmcnt(0)')
        k(f'buffer_store_dwordx4 v[{8+4*i}:{11+4*i}], v4, s[12:15], s7 offen')
    k(f'{la}:')
    k('s_endpgm')
    k(f'{name}_aux2:')
    k('s_cmp_lg_u32 s33, 28')
    k(f's_cbranch_scc1 {name}_end')
    k('s_cmp_lg_u32 s30, 0')
    k(f's_cbranch_scc1 {name}_end')
    k.srd(24, 28, WS['PART'][1], WS['PART'][0])
    k.srd(56, 76, 256)
    k(f'''v_mov_b32 v4, {EPOCH_OFF}
    v_mov_b32 v5, 0
    s_mov_b64 exec, 1
    buffer_load_dword v6, v4, s[24:27], 0 offen sc1
    s_mov_b32 s4, 1664525
    s_waitcnt vmcnt(0)
    v_mul_lo_u32 v6, v6, s4
    v_add_u32 v6, 1013904223, v6
    v_max_u32 v6, 1, v6
    buffer_store_dword v6, v5, s[56:59], 0 offen sc1
    buffer_store_dword v6, v4, s[24:27], 0 offen sc1
    ''')
    k(f'{name}_end:')
    k('s_endpgm')
    return k

if __name__ == '__main__':
    ks = [gen_k1('k1a_kernel', 0), gen_k1('k1b_kernel', 1)]
    build_file('k1.s', [(k.name, 256, 512, K1_LDS) for k in ks], [k.text(192) for k in ks])
```

```python
from asmlib import *
GS = 260
G_BYTES = 8*GS*16
U_BYTES = 8*48*16
CH_BYTES = G_BYTES + U_BYTES
CONV_LDS = 2*CH_BYTES + 4*2048

def gen_conv_body(k, lds_base):
    k.srd(8, 4, NBYTES['ssm_k'])
    k.srd(12, 28, WS['KVT'][1], WS['KVT'][0])
    k.srd(16, 28, WS['Y2T'][1], WS['Y2T'][0])
    k.srd(20, 6, NBYTES['ssm_D'])
    k(f'''s_lshr_b32 s31, s30, 1
    s_and_b32 s32, s30, 1            ; hf
    s_lshl_b32 s33, s2, 1
    s_add_u32 s33, s33, s31          ; ch
    s_lshl_b32 s34, s33, 12          ; ch*4096
    s_mul_i32 s35, s31, {CH_BYTES}
    s_add_u32 s35, s35, {lds_base}   ; CB
    s_add_u32 s36, s35, {G_BYTES}    ; UB
    v_and_b32 v1, 63, v0             ; lane
    v_lshlrev_b32 v2, 4, v1          ; l*16
    v_subrev_u32 v3, 16, v2
    v_mov_b32 v4, 0x7fff0000
    v_cmp_eq_u32 vcc, 0, v1
    s_lshl_b32 s37, s33, 1
    v_mov_b32 v6, 0
    v_cndmask_b32 v5, v3, v4, vcc
    ''')
    H = 16
    for it in range(4):
        if it == 0:
            k(f'buffer_load_dwordx4 {vr(H,4)}, v5, s[8:11], s34 offen')
        else:
            k(f'buffer_load_dwordx4 {vr(H+8*it,4)}, v2, s[8:11], s34 offen offset:{it*1024-16}')
        k(f'buffer_load_dwordx4 {vr(H+8*it+4,4)}, v2, s[8:11], s34 offen offset:{it*1024}')
    k('buffer_load_ushort v7, v6, s[20:23], s37 offen')
    k('''v_subrev_u32 v8, 256, v2
    v_cmp_gt_u32 vcc, 16, v1
    s_nop 1
    v_cndmask_b32 v8, v8, v4, vcc
    s_mov_b32 exec_hi, 0xffff
    ''')
    for c in range(8):
        k(f's_add_u32 m0, s36, {c*768}')
        k(f's_add_u32 s38, s34, {c*512}')
        k('buffer_load_dwordx4 v8, s[12:15], s38 offen lds')
    k('s_mov_b64 exec, -1')
    k(f'''v_lshrrev_b32 v9, 2, v1
    v_mul_u32_u24 v9, {GS*16}, v9
    v_and_b32 v10, 3, v1
    v_lshl_add_u32 v9, v10, 4, v9
    v_add_u32 v9, s35, v9
    v_mov_b32 v12, 0
    v_mov_b32 v13, 0
    v_mov_b32 v14, 0
    v_mov_b32 v15, 0
    s_mov_b32 exec_hi, 0
    ds_write_b128 v9, v[12:15]
    s_mov_b64 exec, -1
    v_add_u32 v9, s35, v2            ; CB + l*16
    s_mov_b32 s39, 0xffff
    ''')
    E0, E1, O0, O1 = 48, 57, 64, 73
    for it in range(4):
        k(f's_waitcnt vmcnt({9 + 6 - 2*it})')
        D = H + 8*it
        def R(i, dst):
            if i % 2: k(f'v_alignbit_b32 v{dst}, v{D+(i-1)//2}, v{D+(i-1)//2}, 16')
            else: k(f'v_bfi_b32 v{dst}, s39, v{D+i//2}, v{D+i//2-1}')
        if it: k('s_waitcnt lgkmcnt(0)')
        for x in range(0, 6): R(14-2*x, E0+x)
        for x in range(1, 7): R(14-2*x, E1+x)
        for x in range(0, 6): R(15-2*x, O0+x)
        for x in range(1, 7): R(15-2*x, O1+x)
        for c in range(8):
            if c % 2 == 0:
                x0 = (6-c)//2; base = E0 if x0 % 2 == 0 else E1
            else:
                x0 = (7-c)//2; base = O0 if x0 % 2 == 0 else O1
            assert (base + x0) % 2 == 0
            k(f'ds_write_b128 v9, {vr(base+x0,4)} offset:{(c*GS + 4 + 64*it)*16}')
    k(f'''v_and_b32 v10, 7, v1             ; i%8
    v_mul_u32_u24 v10, {GS}, v10
    v_bfe_u32 v11, v1, 3, 1          ; i/8
    v_add_u32 v10, v10, v11
    v_lshrrev_b32 v11, 4, v1         ; kg
    v_sub_u32 v10, v10, v11
    v_lshlrev_b32 v10, 4, v10
    s_add_u32 s40, s35, 64
    v_add_u32 v9, s40, v10
    s_lshl_b32 s40, s32, 6           ; hf*2*32
    v_add_u32 v10, s40, v9
    v_mul_u32_u24 v12, 48, v11
    v_and_b32 v13, 15, v1            ; n
    v_add_u32 v12, v12, v13
    v_lshlrev_b32 v12, 4, v12
    v_add_u32 v11, s36, v12
    s_waitcnt vmcnt(0) lgkmcnt(0)
    ''')
    ACC = 80
    def acc(ct, rr): return ACC + (ct*2+rr)*4
    NB = 3
    AB = 96; BB = 120
    def af(t, rr): return AB + (((t+1) % NB)*2 + rr)*4
    def bfr(t, ct): return BB + (((t+1) % NB)*2 + ct)*4
    def reads(t):
        out = []
        for rr in range(2):
            if t >= 0: out.append(f'ds_read_b128 {vr(af(t,rr),4)}, v10 offset:{32*(2*t+rr)}')
            else: out.append(f'ds_read_b128 {vr(af(t,rr),4)}, v9 offset:{32*rr}')
        for ct in range(2):
            if ct == 0 and t > 30: continue
            if t % 2 == 0:
                a = t//2; imm = (16*ct - a + 16)*16
            else:
                a = (t-1)//2; imm = (4*48 + 16*ct - a - 1 + 16)*16
            out.append(f'ds_read_b128 {vr(bfr(t,ct),4)}, v11 offset:{imm}')
        return out
    for i in range(16): k(f'v_mov_b32 v{ACC+i}, 0')
    lab = k.label('skipm1')
    k('s_cmp_eq_u32 s32, 0')
    k(f's_cbranch_scc1 {lab}')
    for l in reads(-1): k(l)
    k('s_waitcnt lgkmcnt(0)')
    for ct in range(2):
        for rr in range(2):
            k(f'v_mfma_f32_16x16x32_bf16 {vr(acc(ct,rr),4)}, {vr(af(-1,rr),4)}, {vr(bfr(-1,ct),4)}, {vr(acc(ct,rr),4)}')
    k(f'{lab}:')
    T = 63
    r0, r1 = reads(0), reads(1)
    for l in r0 + r1: k(l)
    for t in range(T):
        nxt = reads(t+2) if t+2 < T else []
        n1 = len(reads(t+1)) if t+1 < T else 0
        for l in nxt: k(l)
        k(f's_waitcnt lgkmcnt({n1 + len(nxt)})')
        for ct in (1, 0):
            if ct == 0 and t > 30: continue
            for rr in range(2):
                k(f'v_mfma_f32_16x16x32_bf16 {vr(acc(ct,rr),4)}, {vr(af(t,rr),4)}, {vr(bfr(t,ct),4)}, {vr(acc(ct,rr),4)}')
    k(f'''v_lshrrev_b32 v12, 5, v1         ; g/2
    v_mul_u32_u24 v12, 48, v12
    v_add_u32 v12, v12, v13
    v_lshlrev_b32 v12, 4, v12
    v_bfe_u32 v14, v1, 4, 1
    v_lshl_add_u32 v12, v14, 3, v12
    s_mul_i32 s40, s32, {4*48*16}
    s_add_u32 s40, s40, s36
    v_add_u32 v12, s40, v12
    ''')
    UQ = 16
    for ct in range(2):
        for rr in range(2):
            k(f'ds_read_b64 {vr(UQ+(ct*2+rr)*2,2)}, v12 offset:{(2*rr*48 + 16*ct + 16)*16}')
    k(f'''s_lshl_b32 s41, s30, 11
    s_add_u32 s41, s41, {lds_base + 2*CH_BYTES}
    v_lshlrev_b32 v14, 6, v13
    v_lshrrev_b32 v15, 4, v1
    v_lshl_add_u32 v14, v15, 3, v14
    v_add_u32 v14, s41, v14
    v_lshlrev_b32 v7, 16, v7
    s_mov_b32 s42, 0xffff0000
    s_waitcnt lgkmcnt(0)
    ''')
    for ct in range(2):
        for rr in range(2):
            a = acc(ct, rr); u = UQ + (ct*2+rr)*2
            for h in range(2):
                k(f'v_cvt_pk_bf16_f32 v24, v{a+2*h}, v{a+2*h+1}')
                k(f'v_lshlrev_b32 v25, 16, v{u+h}')
                k(f'v_and_b32 v26, s42, v{u+h}')
                k(f'v_mul_f32 v25, v25, v7')
                k(f'v_mul_f32 v26, v26, v7')
                k(f'v_cvt_pk_bf16_f32 v27, v25, v26')
                k(f'v_lshlrev_b32 v25, 16, v27')
                k(f'v_and_b32 v26, s42, v27')
                k(f'v_lshlrev_b32 v27, 16, v24')
                k(f'v_and_b32 v24, s42, v24')
                k(f'v_add_f32 v25, v25, v27')
                k(f'v_add_f32 v26, v26, v24')
                k(f'v_cvt_pk_bf16_f32 v{u+h}, v25, v26')
            k(f'ds_write_b64 v14, {vr(u,2)} offset:{ct*1024 + rr*32}')
    k(f'''v_add_u32 v14, s41, v2
    v_lshrrev_b32 v15, 2, v1
    v_lshlrev_b32 v15, 7, v15
    v_and_b32 v12, 3, v1
    v_lshl_add_u32 v15, v12, 4, v15
    s_lshl_b32 s40, s32, 6
    s_add_u32 s40, s40, s34
    s_waitcnt lgkmcnt(0)
    ds_read_b128 v[24:27], v14
    ds_read_b128 v[28:31], v14 offset:1024
    s_waitcnt lgkmcnt(1)
    buffer_store_dwordx4 v[24:27], v15, s[16:19], s40 offen
    s_waitcnt lgkmcnt(0)
    buffer_store_dwordx4 v[28:31], v15, s[16:19], s40 offen offset:2048
    ''')

def gen_conv_only(name, kidx):
    k = Kern(name)
    stamp_begin(k)
    k('s_cmp_ge_u32 s2, 224')
    k(f's_cbranch_scc1 {name}_end')
    k(f's_load_dwordx2 s[4:5], s[0:1], {KA["ssm_k"]}')
    k(f's_load_dwordx2 s[6:7], s[0:1], {KA["ssm_D"]}')
    k(f's_load_dwordx2 s[28:29], s[0:1], {KA["ws"]}')
    k('v_lshrrev_b32 v1, 6, v0')
    k('s_nop 0')
    k('v_readfirstlane_b32 s30, v1')
    k('s_waitcnt lgkmcnt(0)')
    gen_conv_body(k, 0)
    stamp_end(k, kidx, 28, 30)
    k(f'{name}_end:')
    k('s_endpgm')
    return k

if __name__ == '__main__':
    ks = [gen_conv_only('conva_kernel', 0), gen_conv_only('convb_kernel', 1)]
    build_file('conv.s', [(k.name, 224, 256, CONV_LDS) for k in ks], [k.text(160) for k in ks])
```

```python
from asmlib import *

def gen_gemm2_body(k, lds_base=0, zflags='', wflags='', no_mfma=False, no_epi=False, rot=0, stamps=None):
    ACC = 16; ZB = 128; WB = 212
    def acc(ft, j): return ACC + (ft*4 + j)*4
    def zf(b, ft): return ZB + b*28 + ft*4
    def wf(b, j): return WB + b*16 + j*4
    def stamp(i):
        if stamps is not None:
            k(f's_memtime s[{70+2*i}:{71+2*i}]')
            k('s_waitcnt lgkmcnt(0)')
            stamps.append(70+2*i)
    k.srd(8, 4, NBYTES['w_sp'])
    k.srd(12, 28, WS['Z2F'][1], WS['Z2F'][0])
    k.srd(16, 28, WS['Z1F'][1], WS['Z1F'][0])
    k.srd(20, 28, WS['PF'][1], WS['PF'][0])
    k.srd(24, 6, NBYTES['b_sp'])
    k('''s_and_b32 s31, s2, 7
    s_lshr_b32 s32, s2, 3
    s_and_b32 s33, s31, 3
    s_lshl_b32 s33, s33, 3
    s_and_b32 s34, s32, 7
    s_add_u32 s33, s33, s34          ; tb
    s_lshr_b32 s34, s31, 2
    s_lshl_b32 s34, s34, 2
    s_lshr_b32 s35, s32, 3
    s_add_u32 s34, s34, s35          ; cb
    v_and_b32 v1, 63, v0             ; lane
    v_and_b32 v2, 15, v0             ; l%16
    v_lshrrev_b32 v3, 4, v1          ; l/16
    v_lshlrev_b32 v4, 4, v1          ; l*16 (Z0)
    v_add_u32 v5, 0x1000, v4         ; Z1
    ; DMA source (even instr: rows 0-7 of tile, odd: rows 8-15): row8 = l/8, pos = l%8, chunk = pos ^ ((row>>1)&7)
    v_xor_b32 v10, v3, v1
    v_and_b32 v10, 7, v10
    v_lshrrev_b32 v11, 3, v1         ; row8
    v_lshlrev_b32 v11, 12, v11
    v_lshl_add_u32 v6, v10, 4, v11
    v_xor_b32 v7, 64, v6
    v_add_u32 v7, 0x8000, v7         ; + 8 rows
    s_lshl_b32 s35, s33, 18          ; tb*64*4096
    v_add_u32 v6, s35, v6
    v_add_u32 v7, s35, v7
    v_lshrrev_b32 v11, 1, v2
    v_xor_b32 v11, v11, v3
    v_lshlrev_b32 v11, 4, v11
    v_lshl_add_u32 v11, v2, 7, v11
    ''')
    k(f's_lshl_b32 s60, s30, 14')
    if lds_base: k(f's_add_u32 s60, s60, {lds_base}')
    k('v_add_u32 v12, s60, v11')
    k('v_xor_b32 v13, 64, v12')
    for j in range(4):
        k(f's_xor_b32 s36, s30, {j}')
        k(f's_lshl_b32 s36, s36, 16')
        k(f's_lshl_b32 s37, s30, 7')
        k(f's_add_u32 s{62+j}, s36, s37')
    k('s_mul_i32 s38, s30, 114688')
    k('s_mul_i32 s39, s34, 7168')
    k('s_add_u32 s38, s38, s39')
    k('s_and_b32 s61, s34, 3')
    k('s_lshl_b32 s61, s61, 1')
    k('s_add_u32 s61, s61, s33')
    def phase(p, sd):
        if rot == 0: return [f's_mov_b32 s{sd}, {p}']
        o = [f's_add_u32 s{sd}, s61, {p % rot}', f's_and_b32 s{sd}, s{sd}, {rot-1}']
        if p // rot: o.append(f's_add_u32 s{sd}, s{sd}, {(p//rot)*rot}')
        return o
    def dma(B):
        out = phase(B, 41)
        out.append('s_lshl_b32 s41, s41, 9')
        for j in range(4):
            out.append(f's_add_u32 s42, s41, s{62+j}')
            for h in range(2):
                out.append(f's_add_u32 m0, s60, {(B%2)*8192 + j*2048 + h*1024}')
                out.append('s_nop 0')
                out.append(f'buffer_load_dwordx4 v{6+h}, s[8:11], s42 offen {wflags} lds')
        return out
    def zl(q):
        b = q % 3
        out = phase(q//2, 40)
        out.append(f's_mul_i32 s40, s40, {8*57344}')
        out.append('s_add_u32 s40, s40, s38')
        if q % 2: out.append('s_add_u32 s40, s40, 57344')
        for ft in range(7):
            out.append(f'buffer_load_dwordx4 {vr(zf(b,ft),4)}, v{4 + ft//4}, s[12:15], s40 offen offset:{(ft%4)*1024} {zflags}')
        return out
    def rd(q):
        B, h = q // 2, q % 2
        return [f'ds_read_b128 {vr(wf(q%2,j),4)}, v{12+h} offset:{(B%2)*8192 + j*2048}' for j in range(4)]
    Z1 = ZB + 28
    def epi_loads():
        k('s_lshl_b32 s41, s33, 2')
        k('s_add_u32 s41, s41, s30')
        k('s_mul_i32 s42, s41, 28672')
        k('s_mul_i32 s43, s34, 7')
        for ft in range(7):
            k(f's_add_u32 s44, s43, {ft}')
            k(f's_lshr_b32 s45, s44, 1')
            k(f's_lshl_b32 s45, s45, 10')
            k(f's_and_b32 s44, s44, 1')
            k(f's_lshl_b32 s44, s44, 3')
            k(f's_add_u32 s45, s45, s44')
            k(f's_add_u32 s{50+ft}, s45, s42')
            k(f'buffer_load_dwordx2 {vr(Z1+2*ft,2)}, v4, s[16:19], s{50+ft} offen')
        k('s_lshl_b32 s46, s41, 5')
        k('v_lshlrev_b32 v11, 1, v2')
        k(f'buffer_load_ushort v{Z1+14}, v11, s[24:27], s46 offen')
    seq = []
    def issue(tag, lines, n):
        for l in lines: k(l)
        seq.append((tag, n))
    def wait_for(tag):
        idx = max(i for i, (t, n) in enumerate(seq) if t == tag)
        k(f's_waitcnt vmcnt({sum(n for t, n in seq[idx+1:])})')
    issue('D0', dma(0), 8); issue('Z0', zl(0), 7); issue('D1', dma(1), 8); issue('Z1', zl(1), 7)
    stamp(0)
    wait_for('D0')
    stamp(1)
    for l in rd(0): k(l)
    NQ = 16
    for q in range(NQ):
        if q % 2 == 1 and (q+3)//2 < 8:
            k('s_waitcnt lgkmcnt(0)')
            issue(f'D{(q+3)//2}', dma((q+3)//2), 8)
        if q + 2 < NQ:
            issue(f'Z{q+2}', zl(q+2), 7)
        if q == 14 and not no_epi:
            epi_loads(); seq.append(('E', 8))
        wait_for(f'Z{q}')
        if q + 1 < NQ:
            for l in rd(q+1): k(l)
            k('s_waitcnt lgkmcnt(4)')
        else:
            k('s_waitcnt lgkmcnt(0)')
        b = q % 3
        for ft in range(0 if no_mfma else 7):
            for j in range(4):
                c = '0' if q == 0 else vr(acc(ft,j),4)
                k(f'v_mfma_f32_16x16x32_bf16 {vr(acc(ft,j),4)}, {vr(zf(b,ft),4)}, {vr(wf(q%2,j),4)}, {c}')
        if q == 7: stamp(2)
    stamp(3)
    if no_epi: return
    T = ZB + 44
    k(f's_xor_b32 s48, s60, 0x4000')
    k(f's_xor_b32 s47, s60, 0xc000')
    k(f'v_add_u32 v10, s60, v4')
    k(f'v_add_u32 v11, s48, v4')
    k(f'v_add_u32 v13, s47, v4')
    k('s_nop 7')
    i = 0
    for j in (1, 3):
        for ft in range(7):
            k(f'ds_write_b128 v10, {vr(acc(ft,j),4)} offset:{i*1024}')
            i += 1
    k('s_waitcnt lgkmcnt(0)')
    k('s_barrier')
    for i in list(range(7, 14)) + list(range(7)):
        k(f'ds_read_b128 {vr(T+4*i,4)}, v11 offset:{i*1024}')
    k('s_waitcnt lgkmcnt(0)')
    for ft in range(7):
        for r in range(4):
            k(f'v_add_f32 v{acc(ft,2)+r}, v{acc(ft,2)+r}, v{T+4*(7+ft)+r}')
        k(f'ds_write_b128 v11, {vr(acc(ft,2),4)} offset:{ft*1024}')
    for ft in range(7):
        for r in range(4):
            k(f'v_add_f32 v{acc(ft,0)+r}, v{acc(ft,0)+r}, v{T+4*ft+r}')
    k('s_waitcnt lgkmcnt(0)')
    k('s_barrier')
    for ft in range(7):
        k(f'ds_read_b128 {vr(T+4*ft,4)}, v13 offset:{ft*1024}')
    k('s_waitcnt vmcnt(0)')
    k(f'v_lshlrev_b32 v{Z1+14}, 16, v{Z1+14}')
    k('s_mov_b32 s49, 0xffff0000')
    B = Z1 + 14
    for ft in range(7):
        a = acc(ft, 0)
        k(f's_waitcnt lgkmcnt({6-ft})')
        for r in range(4):
            k(f'v_add_f32 v{a+r}, v{a+r}, v{T+4*ft+r}')
        for h in range(2):
            x0, x1 = a + 2*h, a + 2*h + 1
            t = T + 4*ft + 2*h
            k(f'v_cvt_pk_bf16_f32 v{t}, v{x0}, v{x1}')
            k(f'v_lshlrev_b32 v{x0}, 16, v{t}')
            k(f'v_and_b32 v{x1}, s49, v{t}')
            k(f'v_add_f32 v{x0}, v{x0}, v{B}')
            k(f'v_add_f32 v{x1}, v{x1}, v{B}')
            k(f'v_cvt_pk_bf16_f32 v{t}, v{x0}, v{x1}')
            k(f'v_lshlrev_b32 v{x0}, 16, v{t}')
            k(f'v_and_b32 v{x1}, s49, v{t}')
            z = Z1 + 2*ft + h
            k(f'v_lshlrev_b32 v{t}, 16, v{z}')
            k(f'v_and_b32 v{t+1}, s49, v{z}')
            k(f'v_mul_f32 v{x0}, v{x0}, v{t}')
            k(f'v_mul_f32 v{x1}, v{x1}, v{t+1}')
            k(f'v_cvt_pk_bf16_f32 v{z}, v{x0}, v{x1}')
        k(f'buffer_store_dwordx2 {vr(Z1+2*ft,2)}, v4, s[20:23], s{50+ft} offen')
    stamp(4)

def gen_k2_only(name='k2_kernel', kidx=0, **kw):
    k = Kern(name)
    stamp_begin(k)
    k('s_cmp_ge_u32 s2, 256')
    k(f's_cbranch_scc1 {name}_end')
    k(f's_load_dwordx2 s[4:5], s[0:1], {KA["w_sp"]}')
    k(f's_load_dwordx2 s[6:7], s[0:1], {KA["b_sp"]}')
    k(f's_load_dwordx2 s[28:29], s[0:1], {KA["ws"]}')
    k('v_lshrrev_b32 v1, 6, v0')
    k('s_nop 0')
    k('v_readfirstlane_b32 s30, v1')
    k('s_waitcnt lgkmcnt(0)')
    st = []
    gen_gemm2_body(k, stamps=st, **kw)
    stamp_end(k, kidx, 28, 30, extra=st)
    k(f'{name}_end:')
    k('s_endpgm')
    return k

if __name__ == '__main__':
    ks = []
    for rot in (0, 8):
        for nm, kw in [('full', {}), ('noepi', dict(no_epi=True)), ('nomfma', dict(no_epi=True, no_mfma=True))]:
            ks.append(gen_k2_only(f'k2{nm}_r{rot}_kernel', kidx=len(ks), rot=rot, **kw))
    build_file('k2.s', [(k.name, 256, 256, 65536) for k in ks], [k.text(256) for k in ks])
```

```python
from asmlib import *

LOG2E = 0x3fb8aa3b
def gen_k3(name='k3_kernel', kidx=None):
    k = Kern(name)
    if kidx is not None: stamp_begin(k)
    k('s_cmp_ge_u32 s2, 224')
    k(f's_cbranch_scc1 {name}_end')
    k(f's_load_dwordx2 s[4:5], s[0:1], {KA["q"]}')
    k(f's_load_dwordx2 s[6:7], s[0:1], {KA["out"]}')
    k(f's_load_dwordx2 s[28:29], s[0:1], {KA["ws"]}')
    k('''v_lshrrev_b32 v1, 6, v0
    v_and_b32 v2, 63, v0             ; lane
    v_readfirstlane_b32 s30, v1      ; wave
    s_and_b32 s31, s2, 7
    s_lshr_b32 s32, s2, 3
    s_and_b32 s33, s32, 3
    s_lshl_b32 s31, s31, 2
    s_add_u32 s33, s33, s31          ; tb
    s_lshr_b32 s34, s32, 2           ; db
    v_lshlrev_b32 v4, 4, v2          ; l*16
    v_add_u32 v5, 0x1000, v4
    v_lshrrev_b32 v6, 3, v2          ; l/8  (row8)
    v_and_b32 v7, 7, v2              ; l%8  (octet)
    s_waitcnt lgkmcnt(0)
    ''')
    k.srd(8, 28, WS['PF'][1], WS['PF'][0])
    k.srd(12, 28, WS['WOF'][1], WS['WOF'][0])
    k.srd(16, 28, WS['Y2T'][1], WS['Y2T'][0])
    k.srd(20, 28, WS['ST1'][1], WS['ST1'][0])
    k.srd(24, 4, NBYTES['q'])
    k.srd(36, 6, NBYTES['out'])
    YT = 65536; TR = 73728
    k('''v_lshlrev_b32 v8, 12, v6
    v_lshl_add_u32 v8, v7, 4, v8
    s_lshl_b32 s40, s34, 18          ; db*64*4096
    s_lshl_b32 s41, s30, 16          ; w*16*4096
    s_add_u32 s40, s40, s41
    s_lshl_b32 s41, s33, 7
    s_add_u32 s40, s40, s41
    s_add_u32 s41, s40, 0x8000
    s_lshl_b32 s42, s30, 11
    ''')
    k(f's_add_u32 m0, s42, {YT}')
    k('s_nop 0')
    k('buffer_load_dwordx4 v8, s[16:19], s40 offen lds')
    k(f's_add_u32 m0, s42, {YT+1024}')
    k('s_nop 0')
    k('buffer_load_dwordx4 v8, s[16:19], s41 offen lds')
    k('''v_mul_u32_u24 v9, 896, v6
    v_lshl_add_u32 v9, v7, 4, v9
    s_lshl_b32 s43, s33, 6
    s_lshl_b32 s44, s30, 4
    s_add_u32 s43, s43, s44          ; row0
    s_mul_i32 s44, s43, 896
    s_lshl_b32 s45, s34, 7
    s_add_u32 s44, s44, s45          ; soffset h=0
    s_add_u32 s45, s44, 7168         ; h=1
    s_lshl_b32 s46, s43, 3
    v_lshlrev_b32 v10, 3, v6
    ''')
    X = 12
    k(f'buffer_load_dwordx4 v[12:15], v9, s[24:27], s44 offen')
    k(f'buffer_load_dwordx4 v[16:19], v9, s[24:27], s45 offen')
    k(f'buffer_load_dwordx2 v[20:21], v10, s[20:23], s46 offen')
    k(f'buffer_load_dwordx2 v[22:23], v10, s[20:23], s46 offen offset:64')
    FB = 32
    def wf(q, i): return FB + q*32 + i*4
    def pf(q, j): return FB + q*32 + 16 + j*4
    k('s_mul_i32 s47, s30, 7168')
    for i in range(4):
        k(f's_lshl_b32 s48, s34, 2')
        k(f's_add_u32 s48, s48, {i}')
        k(f's_mul_i32 s48, s48, 28672')
        k(f's_add_u32 s{50+i}, s48, s47')
        k(f's_lshl_b32 s48, s33, 2')
        k(f's_add_u32 s48, s48, {i}')
        k(f's_mul_i32 s48, s48, 28672')
        k(f's_add_u32 s{54+i}, s48, s47')
    for q in range(7):
        for i in range(4):
            k(f'buffer_load_dwordx4 {vr(wf(q,i),4)}, v{4+q//4}, s[12:15], s{50+i} offen offset:{(q%4)*1024}')
            k(f'buffer_load_dwordx4 {vr(pf(q,i),4)}, v{4+q//4}, s[8:11], s{54+i} offen offset:{(q%4)*1024}')
    k('s_waitcnt vmcnt(56)')
    k('s_barrier')
    k('''v_lshrrev_b32 v24, 2, v2         ; l/4 = 4g + r
    v_lshlrev_b32 v24, 7, v24
    v_and_b32 v25, 3, v2
    v_lshl_add_u32 v24, v25, 3, v24
    s_lshl_b32 s48, s30, 5
    v_add_u32 v24, s48, v24
    ''')
    k(f'v_add_u32 v24, {YT}, v24')
    k('''v_and_b32 v25, 15, v2
    v_mul_u32_u24 v25, 144, v25
    v_lshrrev_b32 v3, 4, v2
    v_lshl_add_u32 v25, v3, 3, v25
    s_mul_i32 s48, s30, 2304
    ''')
    k(f's_add_u32 s48, s48, {TR}')
    k('v_add_u32 v25, s48, v25')
    for half in range(2):
        for i in range(2):
            k(f'ds_read_b64_tr_b16 v[{26+2*i}:{27+2*i}], v24 offset:{(2*half+i)*2048}')
        k('s_waitcnt lgkmcnt(0)')
        for i in range(2):
            k(f'ds_write_b64 v25, v[{26+2*i}:{27+2*i}] offset:{(2*half+i)*32}')
        k('s_waitcnt lgkmcnt(0)')
    k('''v_mul_u32_u24 v25, 144, v6
    v_lshl_add_u32 v25, v7, 4, v25
    v_add_u32 v25, s48, v25
    s_mov_b32 s49, 0xffff0000
    ''')
    for h in range(2):
        k(f'ds_read_b128 v[28:31], v25 offset:{h*8*144}')
        k('s_waitcnt lgkmcnt(0)')
        m, r = 20+2*h, 21+2*h
        for d in range(4):
            xs = 12 + 4*h + d
            k(f'v_lshlrev_b32 v24, 16, v{xs}')
            k(f'v_and_b32 v26, s49, v{xs}')
            k(f'v_sub_f32 v24, v24, v{m}')
            k(f'v_sub_f32 v26, v26, v{m}')
            k(f'v_cvt_pk_bf16_f32 v27, v24, v26')
            k(f'v_lshlrev_b32 v24, 16, v27')
            k(f'v_and_b32 v26, s49, v27')
            k(f'v_mul_f32 v24, v24, v{r}')
            k(f'v_mul_f32 v26, v26, v{r}')
            k(f'v_cvt_pk_bf16_f32 v27, v24, v26')
            k(f'v_lshlrev_b32 v24, 16, v27')
            k(f'v_and_b32 v26, s49, v27')
            k(f'v_lshlrev_b32 v27, 16, v{28+d}')
            k(f'v_and_b32 v3, s49, v{28+d}')
            k(f'v_mul_f32 v24, v24, v27')
            k(f'v_mul_f32 v26, v26, v3')
            k(f'v_cvt_pk_bf16_f32 v27, v24, v26')
            k(f'v_accvgpr_write_b32 a{64+4*h+d}, v27')
    def acc(i, j): return (i*4+j)*4
    for q in range(7):
        k(f's_waitcnt vmcnt({(6-q)*8})')
        for i in range(4):
            for j in range(4):
                c = '0' if q == 0 else f'a[{acc(i,j)}:{acc(i,j)+3}]'
                k(f'v_mfma_f32_16x16x32_bf16 a[{acc(i,j)}:{acc(i,j)+3}], {vr(wf(q,i),4)}, {vr(pf(q,j),4)}, {c}')
    k('s_lshl_b32 s48, s30, 14')
    k('v_add_u32 v24, s48, v4')
    k('s_nop 7')
    for j in range(4):
        for i in range(4):
            k(f'ds_write_b128 v24, a[{acc(i,j)}:{acc(i,j)+3}] offset:{(j*4+i)*1024}')
    k('''v_lshrrev_b32 v25, 1, v7
    v_lshlrev_b32 v25, 10, v25       ; i*1024
    v_and_b32 v26, 1, v7
    v_lshl_add_u32 v25, v26, 9, v25  ; + (oct%2)*2*256
    v_lshl_add_u32 v25, v6, 4, v25   ; + t*16
    s_lshl_b32 s48, s30, 12
    v_add_u32 v25, s48, v25
    s_waitcnt lgkmcnt(0)
    s_barrier
    ''')
    R = 32
    for h in range(2):
        for p in range(4):
            for gg in range(2):
                k(f'ds_read_b128 {vr(R + ((h*4+p)*2+gg)*4, 4)}, v25 offset:{p*16384 + gg*256 + h*128}')
    k(f's_mov_b32 s48, {LOG2E | 0x80000000}')
    for h in range(2):
        k(f's_waitcnt lgkmcnt({8 if h == 0 else 0})')
        b = R + h*32
        for e in range(8):
            k(f'v_add_f32 v{b+e}, v{b+e}, v{b+8+e}')
            k(f'v_add_f32 v{b+16+e}, v{b+16+e}, v{b+24+e}')
        for e in range(8):
            k(f'v_add_f32 v{b+e}, v{b+e}, v{b+16+e}')
        for d in range(4):
            o0, o1 = b+2*d, b+2*d+1
            t0, t1, t2 = b+8+2*d, b+9+2*d, b+16+d
            k(f'v_cvt_pk_bf16_f32 v{t2}, v{o0}, v{o1}')
            k(f'v_lshlrev_b32 v{o0}, 16, v{t2}')
            k(f'v_and_b32 v{o1}, s49, v{t2}')
            k(f'v_mul_f32 v{t0}, s48, v{o0}')
            k(f'v_mul_f32 v{t1}, s48, v{o1}')
            k(f'v_exp_f32 v{t0}, v{t0}')
            k(f'v_exp_f32 v{t1}, v{t1}')
            k('s_nop 0')
            k(f'v_add_f32 v{t0}, 1.0, v{t0}')
            k(f'v_add_f32 v{t1}, 1.0, v{t1}')
            k(f'v_rcp_f32 v{t0}, v{t0}')
            k(f'v_rcp_f32 v{t1}, v{t1}')
            k(f'v_accvgpr_read_b32 v{t2}, a{64+4*h+d}')
            k(f'v_mul_f32 v{o0}, v{o0}, v{t0}')
            k(f'v_mul_f32 v{o1}, v{o1}, v{t1}')
            k(f'v_cvt_pk_bf16_f32 v{t0}, v{o0}, v{o1}')
            k(f'v_lshlrev_b32 v{o0}, 16, v{t0}')
            k(f'v_and_b32 v{o1}, s49, v{t0}')
            k(f'v_lshlrev_b32 v{t0}, 16, v{t2}')
            k(f'v_and_b32 v{t1}, s49, v{t2}')
            k(f'v_mul_f32 v{o0}, v{o0}, v{t0}')
            k(f'v_mul_f32 v{o1}, v{o1}, v{t1}')
            k(f'v_cvt_pk_bf16_f32 v{t0}, v{o0}, v{o1}')
            k(f'v_lshlrev_b32 v{o0}, 16, v{t0}')
            k(f'v_and_b32 v{o1}, s49, v{t0}')
            xs = 12 + 4*h + d
            k(f'v_lshlrev_b32 v{t0}, 16, v{xs}')
            k(f'v_and_b32 v{t1}, s49, v{xs}')
            k(f'v_add_f32 v{o0}, v{o0}, v{t0}')
            k(f'v_add_f32 v{o1}, v{o1}, v{t1}')
            k(f'v_cvt_pk_bf16_f32 v{b+24+d}, v{o0}, v{o1}')
        k(f'buffer_store_dwordx4 {vr(b+24,4)}, v9, s[36:39], s{44+h} offen')
    if kidx is not None: stamp_end(k, kidx, 28, 30)
    k(f'{name}_end:')
    k('s_endpgm')
    return k
K3_LDS = 73728 + 4*2304
K3_VGPR = dict(vgpr=256+72, accum=256)

if __name__ == '__main__':
    ks = [gen_k3('k3a_kernel', 0), gen_k3('k3b_kernel', 1)]
    build_file('k3.s', [(k.name, 224, 256, K3_LDS) for k in ks], [k.text(**K3_VGPR) for k in ks])
```

```python
import sys
from asmlib import *
from k1 import gen_k1, K1_LDS
from k2_gemm import gen_gemm2_body
from k2_conv import gen_conv_body, CONV_LDS
from k3 import gen_k3, K3_LDS, K3_VGPR

def gen_k2(name='k2_kernel', kidx=None):
    k = Kern(name)
    if kidx is not None: stamp_begin(k)
    k('s_cmp_ge_u32 s2, 256')
    k(f's_cbranch_scc1 {name}_end')
    k(f's_load_dwordx2 s[28:29], s[0:1], {KA["ws"]}')
    k('v_lshrrev_b32 v1, 6, v0')
    k('s_nop 0')
    k('v_readfirstlane_b32 s30, v1')
    k('s_cmp_ge_u32 s30, 4')
    k(f's_cbranch_scc1 {name}_conv')
    k(f's_load_dwordx4 s[4:7], s[0:1], {KA["w_sp"]}')
    k('s_waitcnt lgkmcnt(0)')
    st = [] if kidx is not None else None
    gen_gemm2_body(k, stamps=st)
    if kidx is not None: stamp_end(k, kidx, 28, 30, extra=st)
    k('s_endpgm')
    k(f'{name}_conv:')
    k('s_cmp_ge_u32 s2, 224')
    k(f's_cbranch_scc1 {name}_end')
    k(f's_load_dwordx4 s[4:7], s[0:1], {KA["ssm_k"]}')
    k('s_mov_b32 s89, s30')
    k('s_sub_u32 s30, s30, 4')
    k('s_waitcnt lgkmcnt(0)')
    gen_conv_body(k, 65536)
    if kidx is not None: stamp_end(k, kidx, 28, 89)
    k(f'{name}_end:')
    k('s_endpgm')
    return k

def build(path, ts):
    k1 = gen_k1('k1_kernel', 0 if ts else None)
    k2 = gen_k2('k2_kernel', 1 if ts else None)
    k3 = gen_k3('k3_kernel', 2 if ts else None)
    build_file(path, [('k1_kernel', 256, 512, K1_LDS), ('k2_kernel', 256, 512, 65536 + CONV_LDS), ('k3_kernel', 224, 256, K3_LDS)],
               [k1.text(192), k2.text(256), k3.text(**K3_VGPR)])
if __name__ == '__main__':
    build('full_ts.s', True)
    build('recurrent_scan__ssm_conv_h3__mixer_gmlp__prompt.s', False)
```

```python
import sys
from asmlib import *
from k1 import gen_k1, K1_LDS
from k2_gemm import gen_gemm2_body
from k2_conv import gen_conv_body, CONV_LDS
from k3 import gen_k3, K3_LDS, K3_VGPR

def gen_k2(name='k2_kernel', kidx=None, **kw):
    k = Kern(name)
    if kidx is not None: stamp_begin(k)
    k('s_cmp_ge_u32 s2, 256')
    k(f's_cbranch_scc1 {name}_end')
    k(f's_load_dwordx2 s[28:29], s[0:1], {KA["ws"]}')
    k('v_lshrrev_b32 v1, 6, v0')
    k('s_nop 0')
    k('v_readfirstlane_b32 s30, v1')
    k('s_cmp_ge_u32 s30, 4')
    k(f's_cbranch_scc1 {name}_conv')
    k(f's_load_dwordx4 s[4:7], s[0:1], {KA["w_sp"]}')
    k('s_waitcnt lgkmcnt(0)')
    st = [] if kidx is not None else None
    gen_gemm2_body(k, stamps=st, **kw)
    if kidx is not None: stamp_end(k, kidx, 28, 30, extra=st)
    k('s_endpgm')
    k(f'{name}_conv:')
    k('s_cmp_ge_u32 s2, 224')
    k(f's_cbranch_scc1 {name}_end')
    k(f's_load_dwordx4 s[4:7], s[0:1], {KA["ssm_k"]}')
    k('s_setprio 3')
    k('s_mov_b32 s89, s30')
    k('s_sub_u32 s30, s30, 4')
    k('s_waitcnt lgkmcnt(0)')
    gen_conv_body(k, 65536)
    if kidx is not None: stamp_end(k, kidx, 28, 89)
    k(f'{name}_end:')
    k('s_endpgm')
    return k

def build(path, ts, kw2={}, **kw):
    k1 = gen_k1('k1_kernel', 0 if ts else None, **kw)
    k2 = gen_k2('k2_kernel', 1 if ts else None, **kw2)
    k3 = gen_k3('k3_kernel', 2 if ts else None)
    build_file(path, [('k1_kernel', 256, 512, K1_LDS), ('k2_kernel', 256, 512, 65536 + CONV_LDS), ('k3_kernel', 224, 256, K3_LDS)],
               [k1.text(256), k2.text(256), k3.text(**K3_VGPR)])
if __name__ == '__main__':
    build('full_ts.s', True, kw2=dict(rot=0), prefetch=0)
    build('recurrent_scan__ssm_conv_h3__mixer_gmlp__prompt.s', False, kw2=dict(rot=0), prefetch=0)
```

```python
from asmlib import *
import struct
def f32(x): return '0x%08x' % struct.unpack('<I', struct.pack('<f', x))[0]
EPOCH_OFF = 16*4*28*512
SLOT = 24576; WZ1 = 98304; SCR = 155648
XS2 = SCR; CSF = SCR + 1024; CSP = SCR + 3072
K1_LDS = SCR + 1024 + 2048 + 2048
SPIN_MAX = 1 << 14
GC1 = -2*0.7978845608028654*1.4426950408889634
GC2 = GC1*0.044715

def round_bf16_single(k, dst, src):
    k(f'v_cvt_pk_bf16_f32 v{dst}, v{src}, v{src}')
    k(f'v_lshlrev_b32 v{dst}, 16, v{dst}')

def ln_stats(k, S1, S2, n, MB, RS, T):
    k(f'v_mul_f32 v{MB}, {f32(1.0/n)}, v{S1}')
    k(f'v_mul_f32 v{T}, {f32(1.0/n)}, v{S2}')
    k(f'v_fma_f32 v{T}, -v{MB}, v{MB}, v{T}')
    k(f'v_max_f32 v{T}, 0, v{T}')
    round_bf16_single(k, T, T)
    k(f'v_add_f32 v{T}, {f32(1e-5)}, v{T}')
    round_bf16_single(k, T, T)
    k(f'v_sqrt_f32 v{T}, v{T}')
    round_bf16_single(k, MB, MB)
    round_bf16_single(k, T, T)
    k(f'v_rcp_f32 v{RS}, v{T}')
    k('s_nop 0')

class Seq:
    def __init__(self, k): self.k = k; self.seq = []
    def issue(self, tag, lines, n):
        for l in lines: self.k(l)
        self.seq.append((tag, n))
    def wait_for(self, tag):
        idx = max(i for i, (t, n) in enumerate(self.seq) if t == tag)
        self.k(f's_waitcnt vmcnt({sum(n for t, n in self.seq[idx+1:])})')
    def copy(self):
        s = Seq(self.k); s.seq = list(self.seq); return s

def gen_k1(name='k1_kernel', kidx=None, prefetch=4, dbgstage=False, rotate=True):
    k = Kern(name)
    def mkstamp(lst):
        def stamp(i, stage=False):
            if kidx is not None and stage == dbgstage:
                k(f's_memtime s[{80+2*i}:{81+2*i}]')
                k('s_waitcnt lgkmcnt(0)')
                lst.append(80+2*i)
        return stamp
    if kidx is not None: stamp_begin(k)
    k('s_cmp_ge_u32 s2, 256')
    k(f's_cbranch_scc1 {name}_end')
    k('s_load_dwordx8 s[64:71], s[0:1], 0')
    k(f's_load_dwordx4 s[72:75], s[0:1], {KA["w_in"]}')
    k(f's_load_dwordx2 s[48:49], s[0:1], {KA["w_out"]}')
    k(f's_load_dwordx4 s[76:79], s[0:1], {KA["dbg"]}')
    k('''v_lshrrev_b32 v1, 6, v0
    v_and_b32 v2, 31, v0             ; l%32
    v_readfirstlane_b32 s30, v1      ; wave
    v_and_b32 v1, 63, v0             ; lane
    v_lshrrev_b32 v3, 5, v1          ; hi
    s_and_b32 s31, s30, 3            ; sg
    s_lshr_b32 s32, s30, 2           ; role
    s_and_b32 s35, s2, 7             ; xcd
    s_lshr_b32 s3, s2, 3             ; j
    s_cmp_ge_u32 s3, 28
    ''')
    k(f's_cbranch_scc1 {name}_aux')
    k('''s_cmp_ge_u32 s3, 14
    s_cselect_b32 s33, 1, 0
    s_mul_i32 s34, s33, 14
    s_sub_u32 s34, s3, s34           ; cb
    s_mul_i32 s4, s33, 3
    s_add_u32 s4, s4, s34
    s_add_u32 s4, s4, s35
    s_lshl_b32 s7, s35, 1
    s_add_u32 s33, s33, s7           ; rb
    v_lshrrev_b32 v28, 3, v1         ; l/8
    v_lshrrev_b32 v29, 4, v1         ; l>>4
    v_xor_b32 v30, v29, v1
    v_and_b32 v30, 7, v30            ; x chunk (h=0)
    v_mul_u32_u24 v7, 896, v28
    v_lshl_add_u32 v4, v30, 4, v7
    v_xor_b32 v30, 4, v30
    v_lshl_add_u32 v5, v30, 4, v7
    v_add_u32 v5, 7168, v5
    v_and_b32 v29, 1, v29
    v_lshlrev_b32 v29, 2, v29
    v_xor_b32 v30, v29, v1
    v_and_b32 v30, 7, v30            ; w chunk
    v_mul_u32_u24 v6, 3584, v28
    v_lshl_add_u32 v6, v30, 4, v6
    s_mul_i32 s44, s30, 28672        ; 8*w*3584
    s_add_u32 s44, s44, 1792
    v_add_u32 v126, s44, v6
    s_lshl_b32 s7, s33, 7
    s_lshl_b32 s5, s30, 4
    s_add_u32 s7, s7, s5
    s_mul_i32 s6, s7, 896
    s_lshl_b32 s44, s34, 7
    s_lshl_b32 s61, s30, 11          ; w*2048
    s_lshl_b32 s45, s30, 10          ; w*1024
    ''')
    for _ in range(3):
        k('s_cmp_ge_u32 s4, 7')
        k('s_cselect_b32 s5, 7, 0')
        k('s_sub_u32 s4, s4, s5')
    if not rotate: k('s_mov_b32 s4, 0')
    XO = [16, 17, 18, 19, 20, 21, 22]; WO = [23, 24, 25, 26, 27, 46, 47]
    for pos in range(7):
        k(f's_lshl_b32 s5, s4, 7')
        k(f's_add_u32 s{XO[pos]}, s5, s6')
        k(f's_mul_i32 s5, s4, {64*3584}')
        k(f's_add_u32 s{WO[pos]}, s5, s44')
        if pos < 6:
            k('s_add_u32 s4, s4, 1')
            k('s_cmp_eq_u32 s4, 7')
            k('s_cselect_b32 s4, 0, s4')
    k('''s_waitcnt lgkmcnt(0)
    s_mov_b32 s28, s78
    s_mov_b32 s29, s79
    ''')
    k.srd(8, 64, NBYTES['q'])
    k.srd(12, 72, NBYTES['w_in'])
    def dma_items(pos):
        slot = pos % 4
        return [(f'D{pos}', [f's_add_u32 m0, s61, {slot*SLOT}', 's_nop 0', f'buffer_load_dwordx4 v4, s[8:11], s{XO[pos]} offen lds']),
                (f'D{pos}', [f's_add_u32 m0, s45, {slot*SLOT + 16384}', 's_nop 0', f'buffer_load_dwordx4 v126, s[12:15], s{WO[pos]} offen lds']),
                (f'D{pos}', [f's_add_u32 m0, s61, {slot*SLOT + 1024}', 's_nop 0', f'buffer_load_dwordx4 v5, s[8:11], s{XO[pos]} offen lds'])]
    Q = Seq(k)
    for pos in range(2):
        for tag, l in dma_items(pos): Q.issue(tag, l, 1)
        if pos == 0: k('s_barrier')
    def mk_queue(extra):
        q = []
        for pos in range(2, 7):
            for tag, l in dma_items(pos): q.append((max(0, pos-3), tag, l))
        return q + extra
    def pump(Qx, q, st, n=1):
        for _ in range(n):
            if q and q[0][0] <= st:
                _, tag, l = q.pop(0)
                Qx.issue(tag, l, 1)
    k('''v_lshrrev_b32 v28, 1, v2
    v_and_b32 v28, 7, v28            ; f(row)
    v_xor_b32 v28, v28, v3           ; ^hi
    v_lshlrev_b32 v28, 4, v28
    v_lshl_add_u32 v28, v2, 7, v28
    s_lshl_b32 s5, s31, 12           ; sg*32*128
    v_add_u32 v8, s5, v28
    v_xor_b32 v9, 32, v8
    v_xor_b32 v10, 64, v8
    v_xor_b32 v11, 0x60, v8
    v_add_u32 v12, 0xc000, v8
    v_add_u32 v13, 0xc000, v9
    v_add_u32 v14, 0xc000, v10
    v_add_u32 v15, 0xc000, v11
    v_bfe_u32 v29, v1, 2, 2          ; r
    v_lshl_add_u32 v30, v3, 3, v29   ; 8kg + r
    v_lshlrev_b32 v30, 7, v30
    v_and_b32 v25, 3, v1
    v_lshlrev_b32 v25, 3, v25        ; 8c
    v_bfe_u32 v24, v1, 4, 1          ; fhalf
    v_lshl_add_u32 v26, v24, 5, v25
    v_lshrrev_b32 v27, 1, v29        ; r>>1
    v_lshl_add_u32 v26, v27, 6, v26
    v_add_u32 v16, v30, v26          ; p=0
    v_xor_b32 v17, 64, v16           ; p=1
    s_mov_b32 s60, 0xffff0000
    s_cmp_eq_u32 s32, 1
    ''')
    k(f's_cbranch_scc1 {name}_z1')
    ACC = 32; CSR = 64
    def colsum_fetch(part):
        k(f'''v_lshlrev_b32 v96, 4, v1
        v_add_u32 v96, {CSP + part*1024}, v96
        ds_read_b128 v[64:67], v96
        s_lshl_b32 s4, s30, 8
        s_add_u32 s4, s4, {CSF}
        v_lshlrev_b32 v96, 2, v1
        v_add_u32 v96, s4, v96
        v_lshlrev_b32 v97, 4, v3
        v_add_u32 v97, s4, v97
        s_waitcnt lgkmcnt(0)
        v_add_f32 v64, v64, v65
        v_add_f32 v66, v66, v67
        v_add_f32 v64, v64, v66
        ds_write_b32 v96, v64
        s_waitcnt lgkmcnt(0)
        ''')
        for p in range(2):
            for j in range(4):
                k(f'ds_read_b128 {vr(CSR+16*p+4*j,4)}, v97 offset:{p*128 + j*32}')
    st2 = []; stamp = mkstamp(st2)
    Q2 = Q.copy()
    q2 = mk_queue([])
    k.srd(36, 66, NBYTES['k'])
    k.srd(40, 68, NBYTES['v'])
    k.srd(48, 70, NBYTES['shift_k'])
    k.srd(56, 76, 256)
    KP = 176; VP = 198; SK = 214
    for i in range(38): k(f'v_mov_b32 v{KP+i}, 0')
    k('''v_add_u32 v18, 0x10000, v16      ; slots 2,3 : 49152 + 16384
    v_add_u32 v19, 0x10000, v17
    v_add_u32 v16, 0x4000, v16
    v_add_u32 v17, 0x4000, v17
    v_and_b32 v30, 7, v1
    v_lshl_add_u32 v7, v30, 4, v7    ; kv dma voffset: (l/8)*896 + (l%8)*16
    s_mul_i32 s4, s33, 14
    s_add_u32 s4, s4, s34            ; u
    s_mul_i32 s52, s4, 9363
    s_lshr_b32 s52, s52, 16          ; sb
    s_mul_i32 s53, s52, 7
    s_sub_u32 s53, s4, s53           ; dbk
    s_lshl_b32 s54, s52, 6
    s_lshl_b32 s4, s31, 4
    s_add_u32 s54, s54, s4           ; s0
    s_mul_i32 s54, s54, 896
    s_lshl_b32 s4, s53, 7
    s_add_u32 s54, s54, s4
    s_sub_u32 s4, s54, 7168
    v_add_u32 v220, s4, v7
    s_mul_i32 s55, s31, 5120
    v_mov_b32 v221, 0
    v_lshlrev_b32 v222, 3, v1
    ''')
    k(f's_add_u32 s55, s55, {3*SLOT}')
    q2 += [(5, 'EP', ['buffer_load_dword v223, v221, s[56:59], 0 offen sc1']),
           (7, 'KV', ['s_mov_b32 m0, s55', 's_add_u32 s4, s54, 7168', 'buffer_load_dwordx4 v220, s[36:39], 0 offen lds']),
           (7, 'KV', ['s_add_u32 m0, s55, 1024', 's_lshl_b32 s5, s53, 9', 'buffer_load_dwordx4 v7, s[36:39], s54 offen lds']),
           (7, 'KV', ['s_add_u32 m0, s55, 2048', 's_nop 0', 'buffer_load_dwordx4 v7, s[36:39], s4 offen lds']),
           (7, 'KV', ['s_add_u32 m0, s55, 3072', 's_nop 0', 'buffer_load_dwordx4 v7, s[40:43], s54 offen lds']),
           (7, 'KV', ['s_add_u32 m0, s55, 4096', 's_nop 0', 'buffer_load_dwordx4 v7, s[40:43], s4 offen lds']),
           (7, 'KV', [f'buffer_load_dwordx2 v[{SK}:{SK+1}], v222, s[48:51], s5 offen'])]
    FRB = [64, 128]
    def xf(st, ks): return FRB[st % 2] + ks*12
    def wf(st, ks, p): return FRB[st % 2] + ks*12 + 4 + p*4
    stamp(0)
    def mm(st, ks, p):
        first = (st == 0 and ks == 0)
        k(f'v_mfma_f32_32x32x16_bf16 {vr(ACC+16*p,16)}, {vr(wf(st,ks,p),4)}, {vr(xf(st,ks),4)}, {"0" if first else vr(ACC+16*p,16)}')
    for st in range(7):
        slot = st % 4
        hs, so = slot // 2, (slot % 2) * SLOT
        Q2.wait_for(f'D{st}')
        k('s_barrier')
        if st in (0, 1, 2, 4, 6): stamp({0:0, 1:1, 2:2, 4:3, 6:4}[st], True)
        for ks in range(4):
            if st: mm(st-1, ks, 0)
            k(f'ds_read_b128 {vr(xf(st,ks),4)}, v{8+4*hs+ks} offset:{so}')
            for p in range(2):
                for e2 in range(2):
                    k(f'ds_read_b64_tr_b16 {vr(wf(st,ks,p)+2*e2,2)}, v{16+2*hs+p} offset:{so + ks*2048 + e2*512}')
            if st: mm(st-1, ks, 1)
            pump(Q2, q2, st, 2 if st == 0 else 1)
        k('s_waitcnt lgkmcnt(0)')
    for ks in range(4):
        for p in range(2): mm(6, ks, p)
    pump(Q2, q2, 7, 100)
    stamp(1)
    k(f'''s_lshl_b32 s4, s31, 8
    s_add_u32 s4, s4, {XS2}
    v_lshlrev_b32 v102, 3, v2
    v_add_u32 v102, s4, v102
    v_mov_b32 v98, 0
    v_mov_b32 v99, 0
    v_mov_b32 v100, 0
    v_mov_b32 v101, 0
    s_barrier
    ds_read_b64 v[24:25], v102
    ''')
    colsum_fetch(0)
    k(f'''v_mul_f32 v108, v25, v25
    v_mul_f32 v106, {f32(GC1)}, v25
    v_mul_f32 v108, v108, v106
    v_mul_f32 v108, {f32(0.044715)}, v108
    v_sub_f32 v104, 0, v24
    v_sub_f32 v105, 0, v24
    v_mov_b32 v107, v106
    v_mov_b32 v109, v108
    s_mov_b32 s62, 1.0
    s_mov_b32 s63, 1.0
    ''')
    for g in range(4):
        k(f's_waitcnt lgkmcnt({6-2*g})')
        P = [(vr(ACC+2*i,2), vr(CSR+2*i,2), CSR+2*i) for i in range(4*g, 4*g+4)]
        for A, C, c in P: k(f'v_pk_fma_f32 {A}, v[104:105], {C}, {A}')
        for A, C, c in P: k(f'v_pk_mul_f32 {C}, {A}, {A}')
        for A, C, c in P: k(f'v_pk_fma_f32 {C}, {C}, v[108:109], v[106:107]')
        for A, C, c in P: k(f'v_pk_mul_f32 {C}, {C}, {A}')
        for A, C, c in P:
            k(f'v_exp_f32 v{c}, v{c}'); k(f'v_exp_f32 v{c+1}, v{c+1}')
        for A, C, c in P: k(f'v_pk_add_f32 {C}, {C}, s[62:63]')
        for A, C, c in P:
            k(f'v_rcp_f32 v{c}, v{c}'); k(f'v_rcp_f32 v{c+1}, v{c+1}')
        for A, C, c in P: k(f'v_pk_mul_f32 {A}, {A}, {C}')
        for A, C, c in P:
            k(f'v_pk_add_f32 v[98:99], v[98:99], {A}')
            k(f'v_pk_fma_f32 v[100:101], {A}, {A}, v[100:101]')
    k.srd(24, 28, WS['PART'][1], WS['PART'][0])
    k('''v_add_f32 v98, v98, v99
    v_add_f32 v100, v100, v101
    v_mul_f32 v98, v98, v25
    v_mul_f32 v100, v100, v25
    v_mul_f32 v100, v100, v25        ; S2 partial
    v_mov_b32 v99, v98
    v_mov_b32 v101, v100
    v_mov_b32 v103, v25
    s_waitcnt vmcnt(6)
    v_permlane32_swap_b32 v98, v99
    v_permlane32_swap_b32 v100, v101
    s_nop 0
    v_add_f32 v98, v98, v99
    v_add_f32 v100, v100, v101
    ''')
    lp, ok = k.label('eppoll'), k.label('epok')
    k(f's_mov_b32 s5, {SPIN_MAX}')
    k(f'{lp}:')
    k('v_readfirstlane_b32 s61, v223')
    k('s_cmp_lg_u32 s61, 0')
    k(f's_cbranch_scc1 {ok}')
    k('s_sub_u32 s5, s5, 1')
    k('s_cmp_eq_u32 s5, 0')
    k(f's_cbranch_scc1 {ok}')
    k('s_sleep 2')
    k('buffer_load_dword v223, v221, s[56:59], 0 offen sc1')
    k('s_waitcnt vmcnt(0)')
    k(f's_branch {lp}')
    k(f'{ok}:')
    k('''v_mov_b32 v99, s61
    v_mov_b32 v101, s61
    s_lshl_b32 s4, s33, 2
    s_add_u32 s4, s4, s31
    s_mul_i32 s36, s4, 7168          ; (rb*4+sg)*14*512
    s_add_u32 s37, s36, 4096
    s_lshl_b32 s4, s34, 9
    s_add_u32 s4, s4, s36
    v_lshlrev_b32 v97, 4, v1
    s_mov_b32 exec_hi, 0
    buffer_store_dwordx4 v[98:101], v97, s[24:27], s4 offen sc1
    s_mov_b64 exec, -1
    s_barrier
    ''')
    stamp(2)
    k('''s_waitcnt vmcnt(1)
    v_lshlrev_b32 v96, 1, v1
    v_add_u32 v96, s55, v96
    ''')
    for j in range(11):
        k(f'ds_read_u16_d16_hi v{KP+2*j}, v96 offset:{(5+j)*128}')
        k(f'ds_read_u16_d16_hi v{KP+2*j+1}, v96 offset:{(13+j)*128}')
    for j in range(8):
        k(f'ds_read_u16_d16_hi v{VP+2*j}, v96 offset:{3072 + j*128}')
        k(f'ds_read_u16_d16_hi v{VP+2*j+1}, v96 offset:{3072 + (8+j)*128}')
    k.srd(44, 28, WS['KVT'][1], WS['KVT'][0])
    k(f'''v_lshlrev_b32 v216, 16, v{SK}
    v_and_b32 v217, s60, v{SK}
    v_lshlrev_b32 v218, 16, v{SK+1}
    v_and_b32 v219, s60, v{SK+1}
    v_lshlrev_b32 v96, 12, v1
    s_lshl_b32 s4, s53, 18
    s_lshl_b32 s5, s31, 10
    s_add_u32 s4, s4, s5
    s_lshl_b32 s5, s52, 4
    s_add_u32 s4, s4, s5
    s_waitcnt lgkmcnt(0)
    ''')
    T = 64
    for i in range(8):
        for h in range(2):
            d = T+2*i+h
            for tap in range(4):
                if tap == 0: k(f'v_mul_f32 v{d}, v{KP+2*(i+tap)+h}, v{216+3-tap}')
                else: k(f'v_fmac_f32 v{d}, v{KP+2*(i+tap)+h}, v{216+3-tap}')
            k(f'v_mul_f32 v{d}, v{d}, v{VP+2*i+h}')
    for o in range(2):
        for q in range(4):
            k(f'v_cvt_pk_bf16_f32 v{80+4*o+q}, v{T+4*q+o}, v{T+4*q+2+o}')
    k('s_mov_b32 s38, s4')
    stamp(3)
    G = 128
    lp, ok = k.label('stpoll'), k.label('stok')
    k(f's_mov_b32 s5, {SPIN_MAX}')
    k(f'{lp}:')
    for i in range(7):
        k(f'buffer_load_dwordx4 {vr(G+4*i,4)}, v97, s[24:27], s{36+i//4} offen offset:{(i%4)*1024} sc1')
    k('s_sub_u32 s5, s5, 1')
    k('s_waitcnt vmcnt(0)')
    k(f'v_max3_u32 v64, v{G+1}, v{G+3}, v99')
    k(f'v_min3_u32 v65, v{G+1}, v{G+3}, v99')
    for i in range(1, 7):
        k(f'v_max3_u32 v64, v{G+4*i+1}, v{G+4*i+3}, v64')
        k(f'v_min3_u32 v65, v{G+4*i+1}, v{G+4*i+3}, v65')
    k('v_cmp_ne_u32 vcc, v64, v65')
    k('s_cmp_eq_u32 s5, 0')
    k(f's_cbranch_scc1 {ok}')
    k('s_nop 2')
    k(f's_cbranch_vccz {ok}')
    k('s_sleep 2')
    k(f's_branch {lp}')
    k(f'{ok}:')
    stamp(4)
    for o in range(2):
        k(f'buffer_store_dwordx4 {vr(80+4*o,4)}, v96, s[44:47], s38 offen offset:{o*512}')
    for c in (0, 2):
        k(f'v_add_f32 v{G+c}, v{G+c}, v{G+4+c}')
        k(f'v_add_f32 v{G+8+c}, v{G+8+c}, v{G+12+c}')
        k(f'v_add_f32 v{G+16+c}, v{G+16+c}, v{G+20+c}')
        k(f'v_add_f32 v{G+c}, v{G+c}, v{G+24+c}')
        k(f'v_add_f32 v{G+8+c}, v{G+8+c}, v{G+16+c}')
        k(f'v_add_f32 v{G+c}, v{G+c}, v{G+8+c}')
        k(f'v_mov_b32 v{G+c+1}, v{G+c}')
    k(f'''s_nop 1
    v_permlane32_swap_b32 v{G}, v{G+1}
    v_permlane32_swap_b32 v{G+2}, v{G+3}
    s_nop 0
    v_add_f32 v64, v{G}, v{G+1}
    v_add_f32 v65, v{G+2}, v{G+3}
    ''')
    ln_stats(k, 64, 65, 896, 24, 25, 66)
    k.srd(20, 28, WS['Z2F'][1], WS['Z2F'][0])
    k('''v_mul_f32 v24, v24, v25          ; m*r
    v_mul_f32 v25, v25, v103         ; r*rs1
    v_mul_u32_u24 v28, 72, v2
    v_lshl_add_u32 v28, v3, 3, v28
    s_mul_i32 s4, s31, 4608
    v_add_u32 v28, s4, v28
    v_lshrrev_b32 v64, 4, v1
    v_bfe_u32 v65, v1, 2, 2
    v_lshl_add_u32 v64, v64, 3, v65
    v_mul_u32_u24 v64, 72, v64
    v_and_b32 v65, 3, v1
    v_lshl_add_u32 v64, v65, 3, v64
    v_add_u32 v64, s4, v64
    s_lshl_b32 s4, s33, 2
    s_add_u32 s4, s4, s31
    s_mul_i32 s4, s4, 57344          ; ks*56*1024
    s_lshl_b32 s5, s34, 12
    s_add_u32 s4, s4, s5
    ''')
    for p in range(2):
        for j in range(4):
            for h in range(4):
                a = ACC+16*p+4*j+h
                k(f'v_fma_f32 v{a}, v{a}, v25, -v24')
            for h in range(2):
                a = ACC+16*p+4*j+2*h
                k(f'v_cvt_pk_bf16_f32 v{66+2*((4*p+j)%2)+h}, v{a}, v{a+1}')
            k(f'ds_write_b64 v28, {vr(66+2*((4*p+j)%2),2)} offset:{p*2304 + j*16}')
        k('s_waitcnt lgkmcnt(0)')
        for ftl in range(2):
            for e2 in range(2):
                k(f'ds_read_b64_tr_b16 {vr(128+8*p+4*ftl+2*e2,2)}, v64 offset:{p*2304 + e2*288 + ftl*32}')
    for t in range(4):
        k(f's_waitcnt lgkmcnt({max(0, 2*(3-t)) if t >= 2 else 4})')
        k(f'buffer_store_dwordx4 {vr(128+4*t,4)}, v97, s[20:23], s4 offen offset:{t*1024}')
    if kidx is not None: stamp_end(k, kidx, 28, 30, extra=st2)
    k('s_endpgm')
    k(f'{name}_z1:')
    st1 = []; stamp = mkstamp(st1)
    Q1 = Q.copy()
    w1q = []
    for pos in range(7):
        for h in range(2):
            w1q.append((5 if len(w1q) < 4 else 6 if len(w1q) < 8 else 8, 'W1', [f's_add_u32 m0, s62, {WZ1 + pos*8192 + h*1024}', 's_nop 0', f'buffer_load_dwordx4 v{124+h}, s[12:15], s{WO[pos]} offen lds']))
    q1 = mk_queue(w1q)
    XF = 128
    k(f'''v_add_u32 v16, {WZ1}, v16
    v_add_u32 v17, {WZ1}, v17
    s_mul_i32 s4, s31, 57344         ; 16*sg*3584
    v_add_u32 v124, s4, v6
    v_add_u32 v125, 28672, v124
    s_lshl_b32 s62, s31, 11          ; sg*2048
    v_lshrrev_b32 v26, 4, v1         ; G
    v_lshl_add_u32 v25, v26, 5, v25
    v_lshlrev_b32 v27, 6, v27
    v_xor_b32 v25, v25, v27
    v_lshl_add_u32 v25, v29, 7, v25
    v_add_u32 v120, s62, v25
    v_add_u32 v121, 0x10000, v120    ; slots 2,3 (+16384)
    v_add_u32 v122, 0x18000, v120    ; WZ1
    v_add_u32 v120, 0x4000, v120     ; slots 0,1 (+16384)
    ; selector4: ones if (l%16) == l/16
    v_and_b32 v29, 15, v1
    v_cmp_eq_u32 vcc, v29, v26
    v_mov_b32 v29, 0x3f803f80
    v_bfe_u32 v25, v1, 2, 1
    v_cndmask_b32 v20, 0, v29, vcc
    v_cndmask_b32 v21, 0, v29, vcc
    v_cndmask_b32 v22, 0, v29, vcc
    v_cndmask_b32 v23, 0, v29, vcc
    v_cmp_eq_u32 vcc, v25, v24
    s_lshl_b32 s4, s31, 2
    s_add_u32 s4, s4, {CSP}
    v_cndmask_b32 v116, 0, v29, vcc
    v_cndmask_b32 v117, 0, v29, vcc
    v_cndmask_b32 v118, 0, v29, vcc
    v_cndmask_b32 v119, 0, v29, vcc
    v_lshlrev_b32 v123, 4, v1
    v_add_u32 v123, s4, v123
    ''')
    stamp(0)
    GR = 32; RSUM = 48; CF = [64, 72]
    def xstats(st, pst):
        for ks in range(4):
            x = vr(XF+16*st+4*ks, 4)
            first = (st == 0 and ks == 0)
            k(f'v_mfma_f32_32x32x16_bf16 {vr(GR,16)}, {x}, {x}, {"0" if first else vr(GR,16)}')
            pump(Q1, q1, pst)
            k(f'v_mfma_f32_16x16x32_bf16 {vr(RSUM,4)}, v[116:119], {x}, {"0" if first else vr(RSUM,4)}')
            if ks < 2:
                k(f'v_mfma_f32_16x16x32_bf16 v[24:27], v[20:23], {vr(CF[st%2]+4*ks,4)}, {"0" if first else "v[24:27]"}')
    for st in range(7):
        slot = st % 4
        hs, so = slot // 2, (slot % 2) * SLOT
        if st in (1, 2, 3, 5, 6): stamp({1:0, 2:1, 3:2, 5:3, 6:4}[st], True)
        Q1.wait_for(f'D{st}')
        k('s_barrier')
        for ks in range(4):
            k(f'ds_read_b128 {vr(XF+16*st+4*ks,4)}, v{8+4*hs+ks} offset:{so}')
        for e4 in range(4):
            k(f'ds_read_b64_tr_b16 {vr(CF[st%2]+2*e4,2)}, v{120+hs} offset:{so + e4*512}')
        if st == 0: pump(Q1, q1, st, 6)
        else: xstats(st-1, st)
        k('s_waitcnt lgkmcnt(0)')
    xstats(6, 7)
    pump(Q1, q1, 7, 100)
    stamp(1)
    k('s_mov_b64 exec, 0xffff')
    for i in range(4): k(f'ds_write_b32 v123, v{24+i} offset:{i*256}')
    k('s_mov_b64 exec, -1')
    k('s_nop 7')
    masks = [(0xaaaaaaaa, 1), (0xcccccccc, 2), (0xff00ff00, 4), (0xffff0000, 8)]
    for m, d in masks:
        k(f's_mov_b32 vcc_lo, {hex(m)}')
        k(f's_mov_b32 vcc_hi, {hex(m)}')
        for i in range(0, 16, 2*d):
            k(f'v_cndmask_b32 v{GR+i}, v{GR+i}, v{GR+i+d}, vcc')
    k(f'''s_mov_b32 vcc_lo, 0x0f0f0f0f
    s_mov_b32 vcc_hi, 0xf0f0f0f0
    v_cndmask_b32 v30, 0, v{GR}, vcc
    v_cndmask_b32 v31, 0, v{GR}, vcc
    s_lshl_b32 s4, s31, 8
    s_add_u32 s5, s4, {XS2}
    v_permlane32_swap_b32 v30, v31
    v_lshlrev_b32 v96, 3, v2
    v_add_u32 v97, s5, v96
    v_add_f32 v30, v30, v31
    ''')
    ln_stats(k, RSUM, 30, 448, 98, 99, 29)
    k('''ds_write_b64 v97, v[98:99]
    s_waitcnt lgkmcnt(0)
    s_barrier
    ''')
    pump(Q1, q1, 8, 100)
    lab = k.label('nost')
    k('s_cmp_lg_u32 s34, 0')
    k(f's_cbranch_scc1 {lab}')
    k.srd(52, 28, WS['ST1'][1], WS['ST1'][0])
    k('''s_lshl_b32 s5, s33, 10
    s_add_u32 s4, s4, s5
    s_mov_b32 exec_hi, 0
    buffer_store_dwordx2 v[98:99], v96, s[52:55], s4 offen
    s_mov_b64 exec, -1
    ''')
    k(f'{lab}:')
    k('s_waitcnt vmcnt(0)')
    for half in range(2):
        sts = range(0, 4) if half == 0 else range(4, 7)
        n = 0
        for st in sts:
            for e4 in range(4):
                if n < 14 or True:
                    k(f'ds_read_b64_tr_b16 {vr(32+8*(st%4)+2*e4,2)}, v122 offset:{st*8192 + e4*512}')
                n += 1
        k('s_waitcnt lgkmcnt(0)')
        for st in sts:
            for h in range(2):
                k(f'v_mfma_f32_16x16x32_bf16 v[24:27], v[20:23], {vr(32+8*(st%4)+4*h,4)}, {"0" if (st == 0 and h == 0) else "v[24:27]"}')
    k('s_mov_b64 exec, 0xffff')
    k('s_nop 7')
    for i in range(4): k(f'ds_write_b32 v123, v{24+i} offset:{1024 + i*256}')
    k('''s_mov_b64 exec, -1
    s_waitcnt lgkmcnt(0)
    s_barrier
    ''')
    stamp(2)
    NB = 3
    def wf1(q, p): return 100 + (q % NB)*8 + p*4
    def reads1(q):
        for p in range(2):
            for e2 in range(2):
                k(f'ds_read_b64_tr_b16 {vr(wf1(q,p)+2*e2,2)}, v{16+p} offset:{q*2048 + e2*512}')
    reads1(0); reads1(1)
    for q in range(28):
        if q + 2 < 28:
            reads1(q+2); k('s_waitcnt lgkmcnt(8)')
        else:
            k(f's_waitcnt lgkmcnt({4 if q == 26 else 0})')
        for p in range(2):
            k(f'v_mfma_f32_32x32x16_bf16 {vr(ACC+16*p,16)}, {vr(wf1(q,p),4)}, {vr(XF+4*q,4)}, {"0" if q == 0 else vr(ACC+16*p,16)}')
    stamp(3)
    colsum_fetch(1)
    k.srd(16, 28, WS['Z1F'][1], WS['Z1F'][0])
    k(f'''v_sub_f32 v24, 0, v98
    v_sub_f32 v25, 0, v98
    v_mov_b32 v26, v99
    v_mov_b32 v27, v99
    v_bfe_u32 v28, v1, 4, 1
    v_mul_u32_u24 v28, 28672, v28
    v_and_b32 v29, 15, v1
    v_lshl_add_u32 v29, v3, 4, v29
    v_lshl_add_u32 v28, v29, 4, v28
    s_lshl_b32 s4, s33, 2
    s_add_u32 s4, s4, s31
    s_mul_i32 s4, s4, 57344
    s_lshl_b32 s5, s34, 11
    s_add_u32 s4, s4, s5
    s_waitcnt lgkmcnt(0)
    ''')
    om = {0: 0, 1: 1, 4: 2, 5: 3, 2: 4, 3: 5, 6: 6, 7: 7}
    for p in range(2):
        for i in range(8):
            A, C = vr(ACC+16*p+2*i, 2), vr(CSR+16*p+2*i, 2)
            k(f'v_pk_fma_f32 {A}, v[24:25], {C}, {A}')
            k(f'v_pk_mul_f32 {A}, {A}, v[26:27]')
            k(f'v_cvt_pk_bf16_f32 v{100+8*p+om[i]}, v{ACC+16*p+2*i}, v{ACC+16*p+2*i+1}')
        for u in range(2):
            k(f'buffer_store_dwordx4 {vr(100+8*p+4*u,4)}, v28, s[16:19], s4 offen offset:{p*1024 + u*512}')
    stamp(4)
    if kidx is not None: stamp_end(k, kidx, 28, 30, extra=st1)
    k('s_endpgm')
    k(f'{name}_aux:')
    k('''s_sub_u32 s6, s3, 28
    s_lshl_b32 s34, s35, 2
    s_add_u32 s33, s34, s6           ; a = xcd*4 + (j-28)
    s_waitcnt lgkmcnt(0)
    s_mov_b32 s28, s78
    s_mov_b32 s29, s79
    s_cmp_lg_u32 s33, 28
    ''')
    lne = k.label('noep')
    k(f's_cbranch_scc1 {lne}')
    k('s_cmp_lg_u32 s30, 0')
    k(f's_cbranch_scc1 {lne}')
    k.srd(24, 28, WS['PART'][1], WS['PART'][0])
    k.srd(56, 76, 256)
    k(f'''v_mov_b32 v4, {EPOCH_OFF}
    v_mov_b32 v5, 0
    s_mov_b64 exec, 1
    buffer_load_dword v6, v4, s[24:27], 0 offen sc1
    s_mov_b32 s4, 1664525
    s_waitcnt vmcnt(0)
    v_mul_lo_u32 v6, v6, s4
    v_add_u32 v6, 1013904223, v6
    v_max_u32 v6, 1, v6
    buffer_store_dword v6, v5, s[56:59], 0 offen sc1
    buffer_store_dword v6, v4, s[24:27], 0 offen sc1
    s_mov_b64 exec, -1
    ''')
    k(f'{lne}:')
    k('s_cmp_ge_u32 s33, 28')
    k(f's_cbranch_scc1 {name}_aux2')
    k.srd(8, 48, NBYTES['w_out'])
    k.srd(12, 28, WS['WOF'][1], WS['WOF'][0])
    k('''v_lshlrev_b32 v4, 4, v1
    s_mul_i32 s4, s33, 28672
    s_lshl_b32 s5, s30, 10
    s_add_u32 s4, s4, s5
    ''')
    la = k.label('a1')
    for i in range(4):
        if i == 3:
            k('s_cmp_ge_u32 s30, 4')
            k(f's_cbranch_scc1 {la}')
        k(f's_add_u32 m0, s5, {i*8192}')
        k(f's_add_u32 s6, s4, {i*8192}')
        k('buffer_load_dwordx4 v4, s[8:11], s6 offen lds')
    k(f'{la}:')
    k('''v_lshrrev_b32 v5, 2, v1
    v_mul_u32_u24 v5, 896, v5
    v_and_b32 v6, 3, v1
    v_lshl_add_u32 v5, v6, 3, v5
    s_lshl_b32 s6, s30, 5
    v_add_u32 v5, s6, v5             ; dt = w + 8i
    s_mul_i32 s6, s30, 28672
    s_lshl_b32 s7, s33, 10
    s_add_u32 s6, s6, s7
    s_waitcnt vmcnt(0)
    s_barrier
    ''')
    la = k.label('a2')
    for i in range(4):
        if i == 3:
            k('s_cmp_ge_u32 s30, 4')
            k(f's_cbranch_scc1 {la}')
        k(f'ds_read_b64_tr_b16 v[{8+4*i}:{9+4*i}], v5 offset:{i*256}')
        k(f'ds_read_b64_tr_b16 v[{10+4*i}:{11+4*i}], v5 offset:{i*256 + 16*896}')
        k(f's_add_u32 s7, s6, {i*8*28672}')
        k('s_waitcnt lgkmcnt(0)')
        k(f'buffer_store_dwordx4 v[{8+4*i}:{11+4*i}], v4, s[12:15], s7 offen')
    k(f'{la}:')
    k(f'{name}_aux2:')
    if prefetch:
        k.srd(16, 74, NBYTES['w_sp'])
        k('''s_and_b32 s4, s35, 3
        s_lshl_b32 s4, s4, 21
        s_lshr_b32 s5, s35, 2
        s_lshl_b32 s5, s5, 20
        s_add_u32 s4, s4, s5
        s_sub_u32 s5, s3, 28
        s_lshl_b32 s5, s5, 18
        s_add_u32 s4, s4, s5
        s_lshl_b32 s5, s30, 15
        s_add_u32 s4, s4, s5
        v_lshlrev_b32 v30, 7, v1
        ''')
        for i in range(prefetch):
            k(f's_add_u32 s5, s4, {i*8192}')
            k(f'buffer_load_dword v{32+i}, v30, s[16:19], s5 offen')
        k('s_waitcnt vmcnt(0)')
    if kidx is not None: stamp_end(k, kidx, 28, 30, extra=[90,90,90,90,90])
    k(f'{name}_end:')
    k('s_endpgm')
    return k

if __name__ == '__main__':
    ks = [gen_k1('k1a_kernel', 0, prefetch=False, dbgstage=True), gen_k1('k1b_kernel', 1, prefetch=False, dbgstage=True)]
    build_file('k1.s', [(k.name, 256, 512, K1_LDS) for k in ks], [k.text(256) for k in ks])
```

```python
from asmlib import *
from k1 import f32, GC1, GC2

def gen_gemm2_body(k, lds_base=0, zflags='', wflags='', no_mfma=False, no_epi=False, rot=8, stamps=None, lead=0):
    ACC = 16; ZB = 128; WB = 212
    def acc(ft, j): return ACC + (ft*4 + j)*4
    def zf(b, ft): return ZB + b*28 + ft*4
    def wf(b, j): return WB + b*16 + j*4
    def stamp(i):
        if stamps is not None:
            k(f's_memtime s[{70+2*i}:{71+2*i}]')
            k('s_waitcnt lgkmcnt(0)')
            stamps.append(70+2*i)
    k.srd(8, 4, NBYTES['w_sp'])
    k.srd(12, 28, WS['Z2F'][1], WS['Z2F'][0])
    k.srd(16, 28, WS['Z1F'][1], WS['Z1F'][0])
    k.srd(20, 28, WS['PF'][1], WS['PF'][0])
    k.srd(24, 6, NBYTES['b_sp'])
    k('''s_and_b32 s31, s2, 7
    s_lshr_b32 s32, s2, 3
    s_and_b32 s33, s31, 3
    s_lshl_b32 s33, s33, 3
    s_and_b32 s34, s32, 7
    s_add_u32 s33, s33, s34          ; tb
    s_lshr_b32 s34, s31, 2
    s_lshl_b32 s34, s34, 2
    s_lshr_b32 s35, s32, 3
    s_add_u32 s34, s34, s35          ; cb
    v_and_b32 v1, 63, v0             ; lane
    v_and_b32 v2, 15, v0             ; l%16
    v_lshrrev_b32 v3, 4, v1          ; l/16
    v_lshlrev_b32 v4, 4, v1          ; l*16 (Z0)
    v_add_u32 v5, 0x1000, v4         ; Z1
    ; DMA source (even instr: rows 0-7 of tile, odd: rows 8-15): row8 = l/8, pos = l%8, chunk = pos ^ ((row>>1)&7)
    v_xor_b32 v10, v3, v1
    v_and_b32 v10, 7, v10
    v_lshrrev_b32 v11, 3, v1         ; row8
    v_lshlrev_b32 v11, 12, v11
    v_lshl_add_u32 v6, v10, 4, v11
    v_xor_b32 v7, 64, v6
    v_add_u32 v7, 0x8000, v7         ; + 8 rows
    s_lshl_b32 s35, s33, 18          ; tb*64*4096
    v_add_u32 v6, s35, v6
    v_add_u32 v7, s35, v7
    v_lshrrev_b32 v11, 1, v2
    v_xor_b32 v11, v11, v3
    v_lshlrev_b32 v11, 4, v11
    v_lshl_add_u32 v11, v2, 7, v11
    ''')
    k(f's_lshl_b32 s60, s30, 14')
    if lds_base: k(f's_add_u32 s60, s60, {lds_base}')
    k('v_add_u32 v12, s60, v11')
    k('v_xor_b32 v13, 64, v12')
    if lead:
        k('s_add_u32 s66, s33, s34')
        k('s_add_u32 s66, s66, s30')
        k('s_and_b32 s66, s66, 3')
    else:
        k('s_mov_b32 s66, s30')
    for j in range(4):
        k(f's_xor_b32 s36, s30, {j}')
        k(f's_lshl_b32 s36, s36, 16')
        k(f's_lshl_b32 s37, s66, 7')
        k(f's_add_u32 s{62+j}, s36, s37')
    k('s_mul_i32 s38, s66, 114688')
    k('s_mul_i32 s39, s34, 7168')
    k('s_add_u32 s38, s38, s39')
    k('s_add_u32 s61, s34, s33')
    if lead:
        k('s_cmp_eq_u32 s30, 0')
        k(f's_cselect_b32 s61, 0, {8-lead}')
    def phase(p, sd):
        if rot == 0: return [f's_mov_b32 s{sd}, {p}']
        o = [f's_add_u32 s{sd}, s61, {p % rot}', f's_and_b32 s{sd}, s{sd}, {rot-1}']
        if p // rot: o.append(f's_add_u32 s{sd}, s{sd}, {(p//rot)*rot}')
        return o
    def dma(B):
        out = phase(B, 41)
        out.append('s_lshl_b32 s41, s41, 9')
        for j in range(4):
            out.append(f's_add_u32 s42, s41, s{62+j}')
            for h in range(2):
                out.append(f's_add_u32 m0, s60, {(B%2)*8192 + j*2048 + h*1024}')
                out.append('s_nop 0')
                out.append(f'buffer_load_dwordx4 v{6+h}, s[8:11], s42 offen {wflags} lds')
        return out
    def zl(q):
        b = q % 3
        out = phase(q//2, 40)
        out.append(f's_mul_i32 s40, s40, {8*57344}')
        out.append('s_add_u32 s40, s40, s38')
        if q % 2: out.append('s_add_u32 s40, s40, 57344')
        for ft in range(7):
            out.append(f'buffer_load_dwordx4 {vr(zf(b,ft),4)}, v{4 + ft//4}, s[12:15], s40 offen offset:{(ft%4)*1024} {zflags}')
        return out
    def rd(q):
        B, h = q // 2, q % 2
        return [f'ds_read_b128 {vr(wf(q%2,j),4)}, v{12+h} offset:{(B%2)*8192 + j*2048}' for j in range(4)]
    Z1R = [244, 246, 248, 250, 252, 254, 14]
    BREG = 11
    def epi_loads():
        k('s_lshl_b32 s41, s33, 2')
        k('s_add_u32 s41, s41, s30')
        k('s_mul_i32 s42, s41, 28672')
        k('s_mul_i32 s43, s34, 7')
        for ft in range(7):
            k(f's_add_u32 s44, s43, {ft}')
            k(f's_lshr_b32 s45, s44, 1')
            k(f's_lshl_b32 s45, s45, 10')
            k(f's_and_b32 s44, s44, 1')
            k(f's_lshl_b32 s44, s44, 3')
            k(f's_add_u32 s45, s45, s44')
            k(f's_add_u32 s{50+ft}, s45, s42')
            k(f'buffer_load_dwordx2 {vr(Z1R[ft],2)}, v4, s[16:19], s{50+ft} offen')
        k('s_lshl_b32 s46, s41, 5')
        k('v_lshlrev_b32 v10, 1, v2')
        k(f'buffer_load_ushort v{BREG}, v10, s[24:27], s46 offen')
        k('s_mov_b32 s49, 0xffff0000')
        k(f's_mov_b32 s47, {f32(GC1)}')
        k(f'v_mov_b32 v3, {f32(GC2)}')
    def gelu_ops(z):
        return [f'v_lshlrev_b32 v0, 16, v{z}', f'v_and_b32 v1, s49, v{z}',
                'v_mul_f32 v8, v0, v0', 'v_mul_f32 v9, v1, v1', 'v_fma_f32 v8, v8, v3, s47', 'v_fma_f32 v9, v9, v3, s47',
                'v_mul_f32 v8, v8, v0', 'v_mul_f32 v9, v9, v1', 'v_exp_f32 v8, v8', 'v_exp_f32 v9, v9', None,
                'v_add_f32 v8, 1.0, v8', 'v_add_f32 v9, 1.0, v9', 'v_rcp_f32 v8, v8', 'v_rcp_f32 v9, v9', None,
                'v_mul_f32 v0, v0, v8', 'v_mul_f32 v1, v1, v9', f'v_cvt_pk_bf16_f32 v{z}, v0, v1']
    seq = []
    def issue(tag, lines, n):
        for l in lines: k(l)
        seq.append((tag, n))
    def wait_for(tag):
        idx = max(i for i, (t, n) in enumerate(seq) if t == tag)
        k(f's_waitcnt vmcnt({sum(n for t, n in seq[idx+1:])})')
    issue('D0', dma(0), 8); issue('Z0', zl(0), 7)
    if not no_epi:
        epi_loads(); seq.append(('E', 8))
    issue('D1', dma(1), 8); issue('Z1', zl(1), 7)
    stamp(0)
    wait_for('D0')
    stamp(1)
    for l in rd(0): k(l)
    NQ = 16
    for q in range(NQ):
        if q % 2 == 1 and (q+3)//2 < 8:
            k('s_waitcnt lgkmcnt(0)')
            issue(f'D{(q+3)//2}', dma((q+3)//2), 8)
        if q + 2 < NQ:
            issue(f'Z{q+2}', zl(q+2), 7)
        wait_for(f'Z{q}')
        if q + 1 < NQ:
            for l in rd(q+1): k(l)
            k('s_waitcnt lgkmcnt(4)')
        else:
            k('s_waitcnt lgkmcnt(0)')
        b = q % 3
        go = gelu_ops(Z1R[(q-1)//2] + (q-1) % 2) if (1 <= q <= 14 and not no_epi) else []
        order = [(ft, j) for ft in range(7) for j in range(4)] if q < NQ-1 else [(ft, j) for j in (1, 3, 2, 0) for ft in range(7)]
        for ft, j in ([] if no_mfma else order):
            c = '0' if q == 0 else vr(acc(ft,j),4)
            k(f'v_mfma_f32_16x16x32_bf16 {vr(acc(ft,j),4)}, {vr(zf(b,ft),4)}, {vr(wf(q%2,j),4)}, {c}')
            if go:
                o = go.pop(0)
                if o: k(o)
        if q == 7: stamp(2)
    stamp(3)
    if no_epi: return
    T = ZB + 28
    k(f's_xor_b32 s48, s60, 0x4000')
    k(f's_xor_b32 s47, s60, 0xc000')
    k(f'v_add_u32 v10, s60, v4')
    k(f'v_add_u32 v12, s48, v4')
    k(f'v_add_u32 v13, s47, v4')
    i = 0
    for j in (3, 1):
        for ft in range(7):
            k(f'ds_write_b128 v10, {vr(acc(ft,j),4)} offset:{i*1024}')
            i += 1
    k(f'v_lshlrev_b32 v{BREG}, 16, v{BREG}')
    k('s_waitcnt lgkmcnt(0)')
    k('s_barrier')
    for i in range(14):
        k(f'ds_read_b128 {vr(T+4*i,4)}, v12 offset:{i*1024}')
    for ft in range(7):
        k(f's_waitcnt lgkmcnt({13})' if ft == 0 else f's_waitcnt lgkmcnt(13)')
        for r in range(4):
            k(f'v_add_f32 v{acc(ft,2)+r}, v{acc(ft,2)+r}, v{T+4*ft+r}')
        k(f'ds_write_b128 v12, {vr(acc(ft,2),4)} offset:{ft*1024}')
    k('s_waitcnt lgkmcnt(0)')
    k('s_barrier')
    T2 = ZB
    for ft in range(7):
        k(f'ds_read_b128 {vr(T2+4*ft,4)}, v13 offset:{ft*1024}')
    for ft in range(7):
        for r in range(4):
            k(f'v_add_f32 v{acc(ft,0)+r}, v{acc(ft,0)+r}, v{T+4*(7+ft)+r}')
            k(f'v_add_f32 v{acc(ft,0)+r}, v{acc(ft,0)+r}, v{BREG}')
    for ft in range(7):
        a = acc(ft, 0)
        k(f's_waitcnt lgkmcnt({6-ft})')
        for r in range(4):
            k(f'v_add_f32 v{a+r}, v{a+r}, v{T2+4*ft+r}')
        for h in range(2):
            z = Z1R[ft] + h
            k(f'v_lshlrev_b32 v0, 16, v{z}')
            k(f'v_and_b32 v1, s49, v{z}')
            k(f'v_mul_f32 v0, v0, v{a+2*h}')
            k(f'v_mul_f32 v1, v1, v{a+2*h+1}')
            k(f'v_cvt_pk_bf16_f32 v{z}, v0, v1')
        k(f'buffer_store_dwordx2 {vr(Z1R[ft],2)}, v4, s[20:23], s{50+ft} offen')
    stamp(4)

def gen_k2_only(name='k2_kernel', kidx=0, **kw):
    k = Kern(name)
    stamp_begin(k)
    k('s_cmp_ge_u32 s2, 256')
    k(f's_cbranch_scc1 {name}_end')
    k(f's_load_dwordx2 s[4:5], s[0:1], {KA["w_sp"]}')
    k(f's_load_dwordx2 s[6:7], s[0:1], {KA["b_sp"]}')
    k(f's_load_dwordx2 s[28:29], s[0:1], {KA["ws"]}')
    k('v_lshrrev_b32 v1, 6, v0')
    k('s_nop 0')
    k('v_readfirstlane_b32 s30, v1')
    k('s_waitcnt lgkmcnt(0)')
    st = []
    gen_gemm2_body(k, stamps=st, **kw)
    stamp_end(k, kidx, 28, 30, extra=st)
    k(f'{name}_end:')
    k('s_endpgm')
    return k

if __name__ == '__main__':
    ks = []
    for rot in (0, 8):
        for nm, kw in [('full', {}), ('noepi', dict(no_epi=True)), ('nomfma', dict(no_epi=True, no_mfma=True))]:
            ks.append(gen_k2_only(f'k2{nm}_r{rot}_kernel', kidx=len(ks), rot=rot, **kw))
    build_file('k2.s', [(k.name, 256, 256, 65536) for k in ks], [k.text(256) for k in ks])
```

```python
import gen
from asmlib import *
gen.build('b0.s', False, kw2=dict(rot=0), prefetch=0)
s = open('b0.s').read()
L = [l for l in s.split('\n') if l.startswith('; @launch')]
e = Kern('empty_kernel'); e('s_endpgm')
et = e.text(8)
el = '; @launch kernel=empty_kernel grid=(256,1,1) block=(256,1,1) lds=0'
def mk(name, lines, extra=''):
    t = s.replace('\n'.join(L), '\n'.join(lines)) + extra
    open(f'work/{name}.s', 'w').write(t)
mk('b1', L + [el], et)
mk('b2', L + [el]*3, et)
mk('b3', [L[0], L[0], L[1], L[2]])
mk('b4', [L[0], L[1], L[1], L[2]])
mk('b5', [L[0], L[1], L[2], L[2]])
```

```python
import gen
from asmlib import *
gen.build('c0.s', False, kw2=dict(rot=0), prefetch=0)
s = open('c0.s').read()
L = [l for l in s.split('\n') if l.startswith('; @launch')]
e = Kern('empty_kernel'); e('s_endpgm')
el = '; @launch kernel=empty_kernel grid=(256,1,1) block=(256,1,1) lds=0'
def mk(name, lines, extra=''):
    t = s.replace('\n'.join(L), '\n'.join(lines)) + extra
    open(f'work/{name}.s', 'w').write(t)
mk('c1', [el] + L, e.text(8))
c = Kern('ctouch_kernel')
c('''s_getpc_b64 s[4:5]
ct_here:
s_sub_u32 s4, s4, ct_here-k1_kernel
s_subb_u32 s5, s5, 0
v_lshlrev_b32 v1, 7, v0
global_load_dword v2, v1, s[4:5]
s_waitcnt vmcnt(0)
s_endpgm''')
mk('c2', ['; @launch kernel=ctouch_kernel grid=(64,1,1) block=(256,1,1) lds=0'] + L, c.text(8))
d = Kern('dtouch_kernel')
d('s_cmp_ge_u32 s2, 256')
d('s_cbranch_scc1 dt_end')
names = ['q', 'k', 'v', 'ssm_k', 'w_in', 'w_sp', 'w_out']
for i, n in enumerate(names): d(f's_load_dwordx2 s[{40+2*i}:{41+2*i}], s[0:1], {KA[n]}')
d('s_waitcnt lgkmcnt(0)')
d('s_lshl_b32 s3, s2, 8')
d('v_add_u32 v1, s3, v0')
d('v_lshlrev_b32 v1, 7, v1')
for i, n in enumerate(names):
    d.srd(8+4*i, 40+2*i, NBYTES[n])
    d(f'buffer_load_dword v{2+i}, v1, s[{8+4*i}:{11+4*i}], 0 offen')
d('s_waitcnt vmcnt(0)')
d('dt_end:')
d('s_endpgm')
mk('c3', ['; @launch kernel=dtouch_kernel grid=(256,1,1) block=(256,1,1) lds=0'] + L, d.text(16))
mk('c4', ['; @launch kernel=dtouch_kernel grid=(256,1,1) block=(256,1,1) lds=0']*2 + L, d.text(16))
```

```python
from asmlib import *
import struct
def f32(x): return '0x%08x' % struct.unpack('<I', struct.pack('<f', x))[0]
EPOCH_OFF = 16*4*28*512
SLOT = 24576; WZ1 = 98304; SCR = 155648
XS2 = SCR; CSF = SCR + 1024; CSP = SCR + 3072
K1_LDS = SCR + 1024 + 2048 + 2048
SPIN_MAX = 1 << 14
GC1 = -2*0.7978845608028654*1.4426950408889634
GC2 = GC1*0.044715

def round_bf16_single(k, dst, src):
    k(f'v_cvt_pk_bf16_f32 v{dst}, v{src}, v{src}')
    k(f'v_lshlrev_b32 v{dst}, 16, v{dst}')

def ln_stats(k, S1, S2, n, MB, RS, T):
    k(f'v_mul_f32 v{MB}, {f32(1.0/n)}, v{S1}')
    k(f'v_mul_f32 v{T}, {f32(1.0/n)}, v{S2}')
    k(f'v_fma_f32 v{T}, -v{MB}, v{MB}, v{T}')
    k(f'v_max_f32 v{T}, 0, v{T}')
    round_bf16_single(k, T, T)
    k(f'v_add_f32 v{T}, {f32(1e-5)}, v{T}')
    round_bf16_single(k, T, T)
    k(f'v_sqrt_f32 v{T}, v{T}')
    round_bf16_single(k, MB, MB)
    round_bf16_single(k, T, T)
    k(f'v_rcp_f32 v{RS}, v{T}')
    k('s_nop 0')

class Seq:
    def __init__(self, k): self.k = k; self.seq = []
    def issue(self, tag, lines, n):
        for l in lines: self.k(l)
        self.seq.append((tag, n))
    def wait_for(self, tag):
        idx = max(i for i, (t, n) in enumerate(self.seq) if t == tag)
        self.k(f's_waitcnt vmcnt({sum(n for t, n in self.seq[idx+1:])})')
    def copy(self):
        s = Seq(self.k); s.seq = list(self.seq); return s

def gen_k1(name='k1_kernel', kidx=None, prefetch=4, dbgstage=False, rotate=True, pf2=None, pfflags='', pfz=None, w1s=(5,5,5,5,6,6,6,6), cpf=True):
    k = Kern(name)
    def mkstamp(lst):
        def stamp(i, stage=False):
            if kidx is not None and stage == dbgstage:
                k(f's_memtime s[{80+2*i}:{81+2*i}]')
                k('s_waitcnt lgkmcnt(0)')
                lst.append(80+2*i)
        return stamp
    if kidx is not None: stamp_begin(k)
    k('s_cmp_ge_u32 s2, 256')
    k(f's_cbranch_scc1 {name}_end')
    k('s_load_dwordx8 s[64:71], s[0:1], 0')
    if cpf:
        lab = k.label('cpf')
        k(f'''s_getpc_b64 s[40:41]
        {name}_pc:
        s_sub_u32 s40, s40, {name}_pc-{name}
        s_subb_u32 s41, s41, 0
        s_lshr_b32 s3, s2, 3
        s_lshl_b32 s3, s3, 10
        v_lshlrev_b32 v1, 7, v0
        v_add_u32 v1, s3, v1
        v_cmp_gt_u32 vcc, 8, v0
        s_and_saveexec_b64 s[42:43], vcc
        s_cbranch_execz {lab}
        global_load_dword v255, v1, s[40:41]
        {lab}:
        s_mov_b64 exec, -1
        ''')
    k(f's_load_dwordx4 s[72:75], s[0:1], {KA["w_in"]}')
    k(f's_load_dwordx4 s[76:79], s[0:1], {KA["dbg"]}')
    k('''v_lshrrev_b32 v1, 6, v0
    v_and_b32 v2, 31, v0             ; l%32
    v_readfirstlane_b32 s30, v1      ; wave
    v_and_b32 v1, 63, v0             ; lane
    v_lshrrev_b32 v3, 5, v1          ; hi
    s_and_b32 s31, s30, 3            ; sg
    s_lshr_b32 s32, s30, 2           ; role
    s_and_b32 s35, s2, 7             ; xcd
    s_lshr_b32 s3, s2, 3             ; j
    s_cmp_ge_u32 s3, 28
    ''')
    k(f's_cbranch_scc1 {name}_aux')
    k('''s_mul_i32 s33, s3, 37
    s_lshr_b32 s33, s33, 8           ; j/7
    s_mul_i32 s34, s33, 7
    s_sub_u32 s34, s3, s34           ; j%7
    s_lshl_b32 s4, s33, 1
    s_add_u32 s4, s4, s34
    s_add_u32 s4, s4, s35            ; rot = j%7 + 2*(j/7) + xcd  (< 21)
    s_and_b32 s7, s35, 3
    s_lshl_b32 s7, s7, 2
    s_add_u32 s33, s33, s7
    s_lshr_b32 s7, s35, 2
    s_mul_i32 s7, s7, 7
    s_add_u32 s34, s34, s7           ; cb = 7*(xcd>>2) + j%7
    v_lshrrev_b32 v28, 3, v1         ; l/8
    v_lshrrev_b32 v29, 4, v1         ; l>>4
    v_xor_b32 v30, v29, v1
    v_and_b32 v30, 7, v30            ; x chunk (h=0)
    v_mul_u32_u24 v7, 896, v28
    v_lshl_add_u32 v4, v30, 4, v7
    v_xor_b32 v30, 4, v30
    v_lshl_add_u32 v5, v30, 4, v7
    v_add_u32 v5, 7168, v5
    v_and_b32 v29, 1, v29
    v_lshlrev_b32 v29, 2, v29
    v_xor_b32 v30, v29, v1
    v_and_b32 v30, 7, v30            ; w chunk
    v_mul_u32_u24 v6, 3584, v28
    v_lshl_add_u32 v6, v30, 4, v6
    s_mul_i32 s44, s30, 28672        ; 8*w*3584
    s_add_u32 s44, s44, 1792
    v_add_u32 v126, s44, v6
    s_lshl_b32 s7, s33, 7
    s_lshl_b32 s5, s30, 4
    s_add_u32 s7, s7, s5
    s_mul_i32 s6, s7, 896
    s_lshl_b32 s44, s34, 7
    s_lshl_b32 s61, s30, 11          ; w*2048
    s_lshl_b32 s45, s30, 10          ; w*1024
    ''')
    for _ in range(2):
        k('s_cmp_ge_u32 s4, 7')
        k('s_cselect_b32 s5, 7, 0')
        k('s_sub_u32 s4, s4, s5')
    if not rotate: k('s_mov_b32 s4, 0')
    XO = [16, 17, 18, 19, 20, 21, 22]; WO = [23, 24, 25, 26, 27, 46, 47]
    for pos in range(7):
        k(f's_lshl_b32 s5, s4, 7')
        k(f's_add_u32 s{XO[pos]}, s5, s6')
        k(f's_mul_i32 s5, s4, {64*3584}')
        k(f's_add_u32 s{WO[pos]}, s5, s44')
        if pos < 6:
            k('s_add_u32 s4, s4, 1')
            k('s_cmp_eq_u32 s4, 7')
            k('s_cselect_b32 s4, 0, s4')
    k('''s_waitcnt lgkmcnt(0)
    s_mov_b32 s28, s78
    s_mov_b32 s29, s79
    ''')
    k.srd(8, 64, NBYTES['q'])
    k.srd(12, 72, NBYTES['w_in'])
    def dma_items(pos):
        slot = pos % 4
        return [(f'D{pos}', [f's_add_u32 m0, s61, {slot*SLOT}', 's_nop 0', f'buffer_load_dwordx4 v4, s[8:11], s{XO[pos]} offen lds']),
                (f'D{pos}', [f's_add_u32 m0, s45, {slot*SLOT + 16384}', 's_nop 0', f'buffer_load_dwordx4 v126, s[12:15], s{WO[pos]} offen lds']),
                (f'D{pos}', [f's_add_u32 m0, s61, {slot*SLOT + 1024}', 's_nop 0', f'buffer_load_dwordx4 v5, s[8:11], s{XO[pos]} offen lds'])]
    Q = Seq(k)
    for pos in range(2):
        for tag, l in dma_items(pos): Q.issue(tag, l, 1)
        if pos == 0: k('s_barrier')
    def mk_queue(extra):
        q = []
        for pos in range(2, 7):
            for tag, l in dma_items(pos): q.append((max(0, pos-3), tag, l))
        return q + extra
    def pump(Qx, q, st, n=1):
        for _ in range(n):
            if q and q[0][0] <= st:
                _, tag, l = q.pop(0)
                Qx.issue(tag, l, 1)
    k('''v_lshrrev_b32 v28, 1, v2
    v_and_b32 v28, 7, v28            ; f(row)
    v_xor_b32 v28, v28, v3           ; ^hi
    v_lshlrev_b32 v28, 4, v28
    v_lshl_add_u32 v28, v2, 7, v28
    s_lshl_b32 s5, s31, 12           ; sg*32*128
    v_add_u32 v8, s5, v28
    v_xor_b32 v9, 32, v8
    v_xor_b32 v10, 64, v8
    v_xor_b32 v11, 0x60, v8
    v_add_u32 v12, 0xc000, v8
    v_add_u32 v13, 0xc000, v9
    v_add_u32 v14, 0xc000, v10
    v_add_u32 v15, 0xc000, v11
    v_bfe_u32 v29, v1, 2, 2          ; r
    v_lshl_add_u32 v30, v3, 3, v29   ; 8kg + r
    v_lshlrev_b32 v30, 7, v30
    v_and_b32 v25, 3, v1
    v_lshlrev_b32 v25, 3, v25        ; 8c
    v_bfe_u32 v24, v1, 4, 1          ; fhalf
    v_lshl_add_u32 v26, v24, 5, v25
    v_lshrrev_b32 v27, 1, v29        ; r>>1
    v_lshl_add_u32 v26, v27, 6, v26
    v_add_u32 v16, v30, v26          ; p=0
    v_xor_b32 v17, 64, v16           ; p=1
    s_mov_b32 s60, 0xffff0000
    s_cmp_eq_u32 s32, 1
    ''')
    k(f's_cbranch_scc1 {name}_z1')
    ACC = 32; CSR = 64
    def colsum_fetch(part):
        k(f'''v_lshlrev_b32 v96, 4, v1
        v_add_u32 v96, {CSP + part*1024}, v96
        ds_read_b128 v[64:67], v96
        s_lshl_b32 s4, s30, 8
        s_add_u32 s4, s4, {CSF}
        v_lshlrev_b32 v96, 2, v1
        v_add_u32 v96, s4, v96
        v_lshlrev_b32 v97, 4, v3
        v_add_u32 v97, s4, v97
        s_waitcnt lgkmcnt(0)
        v_add_f32 v64, v64, v65
        v_add_f32 v66, v66, v67
        v_add_f32 v64, v64, v66
        ds_write_b32 v96, v64
        s_waitcnt lgkmcnt(0)
        ''')
        for p in range(2):
            for j in range(4):
                k(f'ds_read_b128 {vr(CSR+16*p+4*j,4)}, v97 offset:{p*128 + j*32}')
    st2 = []; stamp = mkstamp(st2)
    Q2 = Q.copy()
    q2 = mk_queue([])
    k.srd(56, 76, 256)
    k('''v_add_u32 v18, 0x10000, v16      ; slots 2,3 : 49152 + 16384
    v_add_u32 v19, 0x10000, v17
    v_add_u32 v16, 0x4000, v16
    v_add_u32 v17, 0x4000, v17
    v_mov_b32 v221, 0
    ''')
    q2 += [(3, 'EP', ['buffer_load_dword v223, v221, s[56:59], 0 offen sc1'])]
    if pfz is not None:
        k.srd(52, 74, NBYTES['w_sp'])
        k('''s_and_b32 s4, s35, 3
        s_lshl_b32 s4, s4, 21
        s_lshr_b32 s5, s35, 2
        s_lshl_b32 s5, s5, 20
        s_add_u32 s4, s4, s5
        s_lshl_b32 s5, s3, 15
        s_add_u32 s4, s4, s5
        s_lshl_b32 s5, s31, 13
        s_add_u32 s40, s4, s5
        v_lshlrev_b32 v220, 7, v1
        ''')
    if pfz is not None:
        n = len(pfz)
        for i, stg in enumerate(pfz):
            lanes = 64 // n
            m = ((1 << lanes) - 1) << (i*lanes)
            q2.append((stg, 'PF', [f's_mov_b32 exec_lo, {hex(m & 0xffffffff)}', f's_mov_b32 exec_hi, {hex(m >> 32)}',
                                   f'buffer_load_dword v222, v220, s[52:55], s40 offen {pfflags}', 's_mov_b64 exec, -1']))
    FRB = [64, 128]
    def xf(st, ks): return FRB[st % 2] + ks*12
    def wf(st, ks, p): return FRB[st % 2] + ks*12 + 4 + p*4
    stamp(0)
    def mm(st, ks, p):
        first = (st == 0 and ks == 0)
        k(f'v_mfma_f32_32x32x16_bf16 {vr(ACC+16*p,16)}, {vr(wf(st,ks,p),4)}, {vr(xf(st,ks),4)}, {"0" if first else vr(ACC+16*p,16)}')
    for st in range(7):
        slot = st % 4
        hs, so = slot // 2, (slot % 2) * SLOT
        Q2.wait_for(f'D{st}')
        k('s_barrier')
        if st in (0, 1, 2, 4, 6): stamp({0:0, 1:1, 2:2, 4:3, 6:4}[st], True)
        for ks in range(4):
            if st: mm(st-1, ks, 0)
            k(f'ds_read_b128 {vr(xf(st,ks),4)}, v{8+4*hs+ks} offset:{so}')
            for p in range(2):
                for e2 in range(2):
                    k(f'ds_read_b64_tr_b16 {vr(wf(st,ks,p)+2*e2,2)}, v{16+2*hs+p} offset:{so + ks*2048 + e2*512}')
            if st: mm(st-1, ks, 1)
            pump(Q2, q2, st, 2 if st == 0 else 1)
        k('s_waitcnt lgkmcnt(0)')
    for ks in range(4):
        for p in range(2): mm(6, ks, p)
    pump(Q2, q2, 7, 100)
    stamp(1)
    k(f'''s_lshl_b32 s4, s31, 8
    s_add_u32 s4, s4, {XS2}
    v_lshlrev_b32 v102, 3, v2
    v_add_u32 v102, s4, v102
    v_mov_b32 v98, 0
    v_mov_b32 v99, 0
    v_mov_b32 v100, 0
    v_mov_b32 v101, 0
    s_barrier
    ds_read_b64 v[24:25], v102
    ''')
    colsum_fetch(0)
    k(f'''v_mul_f32 v108, v25, v25
    v_mul_f32 v106, {f32(GC1)}, v25
    v_mul_f32 v108, v108, v106
    v_mul_f32 v108, {f32(0.044715)}, v108
    v_sub_f32 v104, 0, v24
    v_sub_f32 v105, 0, v24
    v_mov_b32 v107, v106
    v_mov_b32 v109, v108
    s_mov_b32 s62, 1.0
    s_mov_b32 s63, 1.0
    ''')
    for g in range(4):
        k(f's_waitcnt lgkmcnt({6-2*g})')
        P = [(vr(ACC+2*i,2), vr(CSR+2*i,2), CSR+2*i) for i in range(4*g, 4*g+4)]
        for A, C, c in P: k(f'v_pk_fma_f32 {A}, v[104:105], {C}, {A}')
        for A, C, c in P: k(f'v_pk_mul_f32 {C}, {A}, {A}')
        for A, C, c in P: k(f'v_pk_fma_f32 {C}, {C}, v[108:109], v[106:107]')
        for A, C, c in P: k(f'v_pk_mul_f32 {C}, {C}, {A}')
        for A, C, c in P:
            k(f'v_exp_f32 v{c}, v{c}'); k(f'v_exp_f32 v{c+1}, v{c+1}')
        for A, C, c in P: k(f'v_pk_add_f32 {C}, {C}, s[62:63]')
        for A, C, c in P:
            k(f'v_rcp_f32 v{c}, v{c}'); k(f'v_rcp_f32 v{c+1}, v{c+1}')
        for A, C, c in P: k(f'v_pk_mul_f32 {A}, {A}, {C}')
        for A, C, c in P:
            k(f'v_pk_add_f32 v[98:99], v[98:99], {A}')
            k(f'v_pk_fma_f32 v[100:101], {A}, {A}, v[100:101]')
    k.srd(24, 28, WS['PART'][1], WS['PART'][0])
    k('''v_add_f32 v98, v98, v99
    v_add_f32 v100, v100, v101
    v_mul_f32 v98, v98, v25
    v_mul_f32 v100, v100, v25
    v_mul_f32 v100, v100, v25        ; S2 partial
    v_mov_b32 v99, v98
    v_mov_b32 v101, v100
    v_mov_b32 v103, v25
    ''')
    Q2.wait_for('EP')
    k('''    v_permlane32_swap_b32 v98, v99
    v_permlane32_swap_b32 v100, v101
    s_nop 0
    v_add_f32 v98, v98, v99
    v_add_f32 v100, v100, v101
    ''')
    lp, ok = k.label('eppoll'), k.label('epok')
    k(f's_mov_b32 s5, {SPIN_MAX}')
    k(f'{lp}:')
    k('v_readfirstlane_b32 s61, v223')
    k('s_cmp_lg_u32 s61, 0')
    k(f's_cbranch_scc1 {ok}')
    k('s_sub_u32 s5, s5, 1')
    k('s_cmp_eq_u32 s5, 0')
    k(f's_cbranch_scc1 {ok}')
    k('s_sleep 2')
    k('buffer_load_dword v223, v221, s[56:59], 0 offen sc1')
    k('s_waitcnt vmcnt(0)')
    k(f's_branch {lp}')
    k(f'{ok}:')
    k('''v_mov_b32 v99, s61
    v_mov_b32 v101, s61
    s_lshl_b32 s4, s33, 2
    s_add_u32 s4, s4, s31
    s_mul_i32 s36, s4, 7168          ; (rb*4+sg)*14*512
    s_add_u32 s37, s36, 4096
    s_lshl_b32 s4, s34, 9
    s_add_u32 s4, s4, s36
    v_lshlrev_b32 v97, 4, v1
    s_mov_b32 exec_hi, 0
    buffer_store_dwordx4 v[98:101], v97, s[24:27], s4 offen sc1
    s_mov_b64 exec, -1
    s_barrier
    ''')
    stamp(2)
    k.srd(20, 28, WS['Z2F'][1], WS['Z2F'][0])
    k('''v_mul_u32_u24 v28, 72, v2
    v_lshl_add_u32 v28, v3, 3, v28
    s_mul_i32 s4, s31, 4608
    v_add_u32 v28, s4, v28
    v_lshrrev_b32 v70, 4, v1
    v_bfe_u32 v65, v1, 2, 2
    v_lshl_add_u32 v70, v70, 3, v65
    v_mul_u32_u24 v70, 72, v70
    v_and_b32 v65, 3, v1
    v_lshl_add_u32 v70, v65, 3, v70
    v_add_u32 v70, s4, v70
    s_lshl_b32 s4, s33, 2
    s_add_u32 s4, s4, s31
    s_mul_i32 s4, s4, 57344          ; ks*56*1024
    s_lshl_b32 s5, s34, 12
    s_add_u32 s38, s4, s5
    ''')
    stamp(3)
    G = 128
    lp, ok = k.label('stpoll'), k.label('stok')
    k(f's_mov_b32 s5, {SPIN_MAX}')
    k(f'{lp}:')
    for i in range(7):
        k(f'buffer_load_dwordx4 {vr(G+4*i,4)}, v97, s[24:27], s{36+i//4} offen offset:{(i%4)*1024} sc1')
    k('s_sub_u32 s5, s5, 1')
    k('s_waitcnt vmcnt(0)')
    k(f'v_max3_u32 v64, v{G+1}, v{G+3}, v99')
    k(f'v_min3_u32 v65, v{G+1}, v{G+3}, v99')
    for i in range(1, 7):
        k(f'v_max3_u32 v64, v{G+4*i+1}, v{G+4*i+3}, v64')
        k(f'v_min3_u32 v65, v{G+4*i+1}, v{G+4*i+3}, v65')
    k('v_cmp_ne_u32 vcc, v64, v65')
    k('s_cmp_eq_u32 s5, 0')
    k(f's_cbranch_scc1 {ok}')
    k('s_nop 2')
    k(f's_cbranch_vccz {ok}')
    k('s_sleep 2')
    k(f's_branch {lp}')
    k(f'{ok}:')
    stamp(4)
    for c in (0, 2):
        k(f'v_add_f32 v{G+c}, v{G+c}, v{G+4+c}')
        k(f'v_add_f32 v{G+8+c}, v{G+8+c}, v{G+12+c}')
        k(f'v_add_f32 v{G+16+c}, v{G+16+c}, v{G+20+c}')
        k(f'v_add_f32 v{G+c}, v{G+c}, v{G+24+c}')
        k(f'v_add_f32 v{G+8+c}, v{G+8+c}, v{G+16+c}')
        k(f'v_add_f32 v{G+c}, v{G+c}, v{G+8+c}')
        k(f'v_mov_b32 v{G+c+1}, v{G+c}')
    k(f'''s_nop 1
    v_permlane32_swap_b32 v{G}, v{G+1}
    v_permlane32_swap_b32 v{G+2}, v{G+3}
    s_nop 0
    v_add_f32 v64, v{G}, v{G+1}
    v_add_f32 v65, v{G+2}, v{G+3}
    ''')
    ln_stats(k, 64, 65, 896, 24, 25, 66)
    k('''v_mul_f32 v24, v24, v25          ; m*r
    v_mul_f32 v25, v25, v103         ; r*rs1
    ''')
    for p in range(2):
        for j in range(4):
            for h in range(4):
                a = ACC+16*p+4*j+h
                k(f'v_fma_f32 v{a}, v{a}, v25, -v24')
            for h in range(2):
                a = ACC+16*p+4*j+2*h
                k(f'v_cvt_pk_bf16_f32 v{66+2*((4*p+j)%2)+h}, v{a}, v{a+1}')
            k(f'ds_write_b64 v28, {vr(66+2*((4*p+j)%2),2)} offset:{p*2304 + j*16}')
        k('s_waitcnt lgkmcnt(0)')
        for ftl in range(2):
            for e2 in range(2):
                k(f'ds_read_b64_tr_b16 {vr(128+8*p+4*ftl+2*e2,2)}, v70 offset:{p*2304 + e2*288 + ftl*32}')
    for t in range(4):
        k(f's_waitcnt lgkmcnt({max(0, 2*(3-t)) if t >= 2 else 4})')
        k(f'buffer_store_dwordx4 {vr(128+4*t,4)}, v97, s[20:23], s38 offen offset:{t*1024}')
    if kidx is not None: stamp_end(k, kidx, 28, 30, extra=st2)
    k('s_endpgm')
    k(f'{name}_z1:')
    st1 = []; stamp = mkstamp(st1)
    Q1 = Q.copy()
    w1q = []
    for pos in range(7):
        for h in range(2):
            w1q.append((w1s[len(w1q)] if len(w1q) < len(w1s) else 8, 'W1', [f's_add_u32 m0, s62, {WZ1 + pos*8192 + h*1024}', 's_nop 0', f'buffer_load_dwordx4 v{124+h}, s[12:15], s{WO[pos]} offen lds']))
    q1 = mk_queue(w1q)
    XF = 128
    k(f'''v_add_u32 v16, {WZ1}, v16
    v_add_u32 v17, {WZ1}, v17
    s_mul_i32 s4, s31, 57344         ; 16*sg*3584
    v_add_u32 v124, s4, v6
    v_add_u32 v125, 28672, v124
    s_lshl_b32 s62, s31, 11          ; sg*2048
    v_lshrrev_b32 v26, 4, v1         ; G
    v_lshl_add_u32 v25, v26, 5, v25
    v_lshlrev_b32 v27, 6, v27
    v_xor_b32 v25, v25, v27
    v_lshl_add_u32 v25, v29, 7, v25
    v_add_u32 v120, s62, v25
    v_add_u32 v121, 0x10000, v120    ; slots 2,3 (+16384)
    v_add_u32 v122, 0x18000, v120    ; WZ1
    v_add_u32 v120, 0x4000, v120     ; slots 0,1 (+16384)
    ; selector4: ones if (l%16) == l/16
    v_and_b32 v29, 15, v1
    v_cmp_eq_u32 vcc, v29, v26
    v_mov_b32 v29, 0x3f803f80
    v_bfe_u32 v25, v1, 2, 1
    v_cndmask_b32 v20, 0, v29, vcc
    v_cndmask_b32 v21, 0, v29, vcc
    v_cndmask_b32 v22, 0, v29, vcc
    v_cndmask_b32 v23, 0, v29, vcc
    v_cmp_eq_u32 vcc, v25, v24
    s_lshl_b32 s4, s31, 2
    s_add_u32 s4, s4, {CSP}
    v_cndmask_b32 v116, 0, v29, vcc
    v_cndmask_b32 v117, 0, v29, vcc
    v_cndmask_b32 v118, 0, v29, vcc
    v_cndmask_b32 v119, 0, v29, vcc
    v_lshlrev_b32 v123, 4, v1
    v_add_u32 v123, s4, v123
    ''')
    stamp(0)
    GR = 32; RSUM = 48; CF = [64, 72]
    def xstats(st, pst):
        for ks in range(4):
            x = vr(XF+16*st+4*ks, 4)
            first = (st == 0 and ks == 0)
            k(f'v_mfma_f32_32x32x16_bf16 {vr(GR,16)}, {x}, {x}, {"0" if first else vr(GR,16)}')
            pump(Q1, q1, pst)
            k(f'v_mfma_f32_16x16x32_bf16 {vr(RSUM,4)}, v[116:119], {x}, {"0" if first else vr(RSUM,4)}')
            if ks < 2:
                k(f'v_mfma_f32_16x16x32_bf16 v[24:27], v[20:23], {vr(CF[st%2]+4*ks,4)}, {"0" if first else "v[24:27]"}')
    for st in range(7):
        slot = st % 4
        hs, so = slot // 2, (slot % 2) * SLOT
        if st in (1, 2, 3, 5, 6): stamp({1:0, 2:1, 3:2, 5:3, 6:4}[st], True)
        Q1.wait_for(f'D{st}')
        k('s_barrier')
        for ks in range(4):
            k(f'ds_read_b128 {vr(XF+16*st+4*ks,4)}, v{8+4*hs+ks} offset:{so}')
        for e4 in range(4):
            k(f'ds_read_b64_tr_b16 {vr(CF[st%2]+2*e4,2)}, v{120+hs} offset:{so + e4*512}')
        if st == 0: pump(Q1, q1, st, 6)
        else: xstats(st-1, st)
        k('s_waitcnt lgkmcnt(0)')
    xstats(6, 7)
    pump(Q1, q1, 7, 100)
    stamp(1)
    k('s_mov_b64 exec, 0xffff')
    for i in range(4): k(f'ds_write_b32 v123, v{24+i} offset:{i*256}')
    k('s_mov_b64 exec, -1')
    k('s_nop 7')
    masks = [(0xaaaaaaaa, 1), (0xcccccccc, 2), (0xff00ff00, 4), (0xffff0000, 8)]
    for m, d in masks:
        k(f's_mov_b32 vcc_lo, {hex(m)}')
        k(f's_mov_b32 vcc_hi, {hex(m)}')
        for i in range(0, 16, 2*d):
            k(f'v_cndmask_b32 v{GR+i}, v{GR+i}, v{GR+i+d}, vcc')
    k(f'''s_mov_b32 vcc_lo, 0x0f0f0f0f
    s_mov_b32 vcc_hi, 0xf0f0f0f0
    v_cndmask_b32 v30, 0, v{GR}, vcc
    v_cndmask_b32 v31, 0, v{GR}, vcc
    s_lshl_b32 s4, s31, 8
    s_add_u32 s5, s4, {XS2}
    v_permlane32_swap_b32 v30, v31
    v_lshlrev_b32 v96, 3, v2
    v_add_u32 v97, s5, v96
    v_add_f32 v30, v30, v31
    ''')
    ln_stats(k, RSUM, 30, 448, 98, 99, 29)
    k('''ds_write_b64 v97, v[98:99]
    s_waitcnt lgkmcnt(0)
    s_barrier
    ''')
    pump(Q1, q1, 8, 100)
    lab = k.label('nost')
    k('s_cmp_lg_u32 s34, 0')
    k(f's_cbranch_scc1 {lab}')
    k.srd(52, 28, WS['ST1'][1], WS['ST1'][0])
    k('''s_lshl_b32 s5, s33, 10
    s_add_u32 s4, s4, s5
    s_mov_b32 exec_hi, 0
    buffer_store_dwordx2 v[98:99], v96, s[52:55], s4 offen
    s_mov_b64 exec, -1
    ''')
    k(f'{lab}:')
    k('s_waitcnt vmcnt(0)')
    for half in range(2):
        sts = range(0, 4) if half == 0 else range(4, 7)
        n = 0
        for st in sts:
            for e4 in range(4):
                if n < 14 or True:
                    k(f'ds_read_b64_tr_b16 {vr(32+8*(st%4)+2*e4,2)}, v122 offset:{st*8192 + e4*512}')
                n += 1
        k('s_waitcnt lgkmcnt(0)')
        for st in sts:
            for h in range(2):
                k(f'v_mfma_f32_16x16x32_bf16 v[24:27], v[20:23], {vr(32+8*(st%4)+4*h,4)}, {"0" if (st == 0 and h == 0) else "v[24:27]"}')
    k('s_mov_b64 exec, 0xffff')
    k('s_nop 7')
    for i in range(4): k(f'ds_write_b32 v123, v{24+i} offset:{1024 + i*256}')
    k('''s_mov_b64 exec, -1
    s_waitcnt lgkmcnt(0)
    s_barrier
    ''')
    stamp(2)
    if pf2 is not None:
        k.srd(52, 74, NBYTES['w_sp'])
        k('''s_and_b32 s4, s35, 3
        s_lshl_b32 s4, s4, 21
        s_lshr_b32 s5, s35, 2
        s_lshl_b32 s5, s5, 20
        s_add_u32 s4, s4, s5
        s_lshl_b32 s5, s3, 15
        s_add_u32 s4, s4, s5
        s_lshl_b32 s5, s31, 13
        s_add_u32 s56, s4, s5
        v_lshlrev_b32 v30, 7, v1
        ''')
    def pf_at(q):
        if pf2 is None: return
        for sg, qq in enumerate(pf2):
            if qq == q:
                lab = k.label('pf')
                k(f's_cmp_lg_u32 s31, {sg}')
                k(f's_cbranch_scc1 {lab}')
                k(f'buffer_load_dword v31, v30, s[52:55], s56 offen {pfflags}')
                k(f'{lab}:')
    NB = 3
    def wf1(q, p): return 100 + (q % NB)*8 + p*4
    def reads1(q):
        for p in range(2):
            for e2 in range(2):
                k(f'ds_read_b64_tr_b16 {vr(wf1(q,p)+2*e2,2)}, v{16+p} offset:{q*2048 + e2*512}')
    reads1(0); reads1(1)
    for q in range(28):
        if q == 2:
            colsum_fetch(1)
        if q + 2 < 28:
            reads1(q+2); k('s_waitcnt lgkmcnt(8)' if q != 2 else 's_waitcnt lgkmcnt(12)')
        else:
            k(f's_waitcnt lgkmcnt({4 if q == 26 else 0})')
        for p in range(2):
            k(f'v_mfma_f32_32x32x16_bf16 {vr(ACC+16*p,16)}, {vr(wf1(q,p),4)}, {vr(XF+4*q,4)}, {"0" if q == 0 else vr(ACC+16*p,16)}')
        pf_at(q)
    stamp(3)
    k.srd(16, 28, WS['Z1F'][1], WS['Z1F'][0])
    k(f'''v_sub_f32 v24, 0, v98
    v_sub_f32 v25, 0, v98
    v_mov_b32 v26, v99
    v_mov_b32 v27, v99
    v_bfe_u32 v28, v1, 4, 1
    v_mul_u32_u24 v28, 28672, v28
    v_and_b32 v29, 15, v1
    v_lshl_add_u32 v29, v3, 4, v29
    v_lshl_add_u32 v28, v29, 4, v28
    s_lshl_b32 s4, s33, 2
    s_add_u32 s4, s4, s31
    s_mul_i32 s4, s4, 57344
    s_lshl_b32 s5, s34, 11
    s_add_u32 s4, s4, s5
    s_waitcnt lgkmcnt(0)
    ''')
    om = {0: 0, 1: 1, 4: 2, 5: 3, 2: 4, 3: 5, 6: 6, 7: 7}
    for p in range(2):
        for i in range(8):
            A, C = vr(ACC+16*p+2*i, 2), vr(CSR+16*p+2*i, 2)
            k(f'v_pk_fma_f32 {A}, v[24:25], {C}, {A}')
            k(f'v_pk_mul_f32 {A}, {A}, v[26:27]')
            k(f'v_cvt_pk_bf16_f32 v{100+8*p+om[i]}, v{ACC+16*p+2*i}, v{ACC+16*p+2*i+1}')
        for u in range(2):
            k(f'buffer_store_dwordx4 {vr(100+8*p+4*u,4)}, v28, s[16:19], s4 offen offset:{p*1024 + u*512}')
    stamp(4)
    pf_at(99)
    if kidx is not None: stamp_end(k, kidx, 28, 30, extra=st1)
    k('s_endpgm')
    k(f'{name}_aux:')
    if cpf:
        lab = k.label('cpf2')
        k(f'''v_lshlrev_b32 v4, 7, v0
        v_cmp_gt_u32 vcc, code_end-{name}, v4
        s_and_saveexec_b64 s[42:43], vcc
        s_cbranch_execz {lab}
        global_load_dword v254, v4, s[40:41]
        {lab}:
        s_mov_b64 exec, -1
        ''')
    k('''s_sub_u32 s6, s3, 28
    s_lshl_b32 s34, s35, 2
    s_add_u32 s33, s34, s6           ; a = xcd*4 + (j-28)
    s_waitcnt lgkmcnt(0)
    s_mov_b32 s28, s78
    s_mov_b32 s29, s79
    s_cmp_lg_u32 s33, 28
    ''')
    lne = k.label('noep')
    k(f's_cbranch_scc1 {lne}')
    k('s_cmp_lg_u32 s30, 0')
    k(f's_cbranch_scc1 {lne}')
    k.srd(24, 28, WS['PART'][1], WS['PART'][0])
    k.srd(56, 76, 256)
    k(f'''v_mov_b32 v4, {EPOCH_OFF}
    v_mov_b32 v5, 0
    s_mov_b64 exec, 1
    buffer_load_dword v6, v4, s[24:27], 0 offen sc1
    s_mov_b32 s4, 1664525
    s_waitcnt vmcnt(0)
    v_mul_lo_u32 v6, v6, s4
    v_add_u32 v6, 1013904223, v6
    v_max_u32 v6, 1, v6
    buffer_store_dword v6, v5, s[56:59], 0 offen sc1
    buffer_store_dword v6, v4, s[24:27], 0 offen sc1
    s_mov_b64 exec, -1
    ''')
    k(f'{lne}:')
    k('s_cmp_ge_u32 s33, 28')
    k(f's_cbranch_scc1 {name}_aux2')
    k.srd(36, 66, NBYTES['k'])
    k.srd(40, 68, NBYTES['v'])
    k.srd(48, 70, NBYTES['shift_k'])
    k.srd(44, 28, WS['KVT'][1], WS['KVT'][0])
    VB = 520*128
    k(f'''s_mul_i32 s52, s33, 37
    s_lshr_b32 s52, s52, 8           ; sq
    s_mul_i32 s53, s52, 7
    s_sub_u32 s53, s33, s53          ; dbk
    ; DMA: wave w loads s-block w (64 rows = 8 instr) of k and v ; chunk' = (l%8) ^ w
    v_lshrrev_b32 v4, 3, v1
    v_mul_u32_u24 v4, 896, v4
    v_xor_b32 v5, s30, v1
    v_and_b32 v5, 7, v5
    v_lshl_add_u32 v4, v5, 4, v4
    s_lshl_b32 s54, s52, 9
    s_lshl_b32 s4, s30, 6
    s_add_u32 s54, s54, s4
    s_mul_i32 s54, s54, 896
    s_lshl_b32 s4, s53, 7
    s_add_u32 s54, s54, s4           ; soffset
    s_lshl_b32 s55, s30, 13          ; w*64*128
    ''')
    for i in range(8):
        k(f's_add_u32 m0, s55, {1024 + i*1024}')
        k(f's_add_u32 s4, s54, {i*7168}')
        k('buffer_load_dwordx4 v4, s[36:39], s4 offen nt lds')
        k(f's_add_u32 m0, s55, {VB + i*1024}')
        k('s_nop 0')
        k('buffer_load_dwordx4 v4, s[40:43], s4 offen nt lds')
    lh = k.label('nohalo')
    k('s_cmp_lg_u32 s30, 0')
    k(f's_cbranch_scc1 {lh}')
    k('''v_xor_b32 v6, 0x70, v4
    s_sub_u32 s4, s54, 7168
    v_add_u32 v6, s4, v6
    s_mov_b32 m0, 0
    s_nop 0
    buffer_load_dwordx4 v6, s[36:39], 0 offen lds
    ''')
    k(f'{lh}:')
    KR = 16; VR = 84; W = 150
    k(f'''; lane = (c8 = l/8, r8 = l%8): channel 8w + c8, s-block r8
    v_lshrrev_b32 v6, 3, v1          ; c8
    v_and_b32 v7, 7, v1              ; r8
    s_lshl_b32 s4, s53, 6
    s_lshl_b32 s5, s30, 3
    s_add_u32 s4, s4, s5             ; ch0
    v_add_u32 v8, s4, v6             ; ch
    v_lshlrev_b32 v9, 3, v8
    buffer_load_dwordx2 v[{W}:{W+1}], v9, s[48:51], 0 offen
    v_lshlrev_b32 v9, 12, v8
    v_lshl_add_u32 v9, v7, 4, v9
    s_lshl_b32 s52, s52, 7           ; sq*8*16
    v_xor_b32 v10, s30, v7
    v_lshlrev_b32 v10, 4, v10
    v_lshl_add_u32 v10, v6, 1, v10
    v_lshl_add_u32 v10, v7, 13, v10
    v_add_u32 v11, 7, v7
    v_and_b32 v11, 7, v11            ; (r8-1)&7
    v_xor_b32 v11, s30, v11
    v_lshlrev_b32 v11, 4, v11
    v_lshl_add_u32 v11, v6, 1, v11
    v_lshl_add_u32 v11, v7, 13, v11
    v_add_u32 v12, {VB}, v10
    s_mov_b32 s60, 0xffff0000
    ''')
    for i in range(67+64+1): k(f'v_mov_b32 v{KR+i}, 0')
    k('s_waitcnt vmcnt(0)')
    k('s_barrier')
    k(f'''v_lshlrev_b32 v{W+2}, 16, v{W}
    v_and_b32 v{W+3}, s60, v{W}
    v_lshlrev_b32 v{W+4}, 16, v{W+1}
    v_and_b32 v{W+5}, s60, v{W+1}
    ''')
    for j in range(3): k(f'ds_read_u16_d16_hi v{KR+j}, v11 offset:{(5+j)*128}')
    def kvreads(col):
        for j in range(8):
            k(f'ds_read_u16_d16_hi v{KR+3+8*col+j}, v10 offset:{1024 + (8*col+j)*128}')
        for j in range(8):
            k(f'ds_read_u16_d16_hi v{VR+8*col+j}, v12 offset:{(8*col+j)*128}')
    kvreads(0)
    for col in range(8):
        k('s_waitcnt lgkmcnt(0)')
        if col < 7: kvreads(col+1)
        T = 160
        for i in range(8):
            b = KR + 8*col + i
            k(f'v_mul_f32 v{T+i}, v{b}, v{W+5}')
            k(f'v_fmac_f32 v{T+i}, v{b+1}, v{W+4}')
            k(f'v_fmac_f32 v{T+i}, v{b+2}, v{W+3}')
            k(f'v_fmac_f32 v{T+i}, v{b+3}, v{W+2}')
            k(f'v_mul_f32 v{T+i}, v{T+i}, v{VR+8*col+i}')
        O = 168 + 4*(col % 2)
        for q in range(4): k(f'v_cvt_pk_bf16_f32 v{O+q}, v{T+2*q}, v{T+2*q+1}')
        k(f'buffer_store_dwordx4 {vr(O,4)}, v9, s[44:47], s52 offen offset:{col*512}')
    k(f'{name}_aux2:')
    if pf2 is not None or pfz is not None:
        k.srd(16, 74, NBYTES['w_sp'])
        k('''s_and_b32 s4, s35, 3
        s_lshl_b32 s4, s4, 21
        s_lshr_b32 s5, s35, 2
        s_lshl_b32 s5, s5, 20
        s_add_u32 s4, s4, s5
        s_lshl_b32 s5, s3, 15
        s_add_u32 s4, s4, s5
        s_lshl_b32 s5, s31, 13
        s_add_u32 s4, s4, s5
        v_lshlrev_b32 v30, 7, v1
        ''')
        k(f'buffer_load_dword v32, v30, s[16:19], s4 offen {pfflags}')
    if prefetch:
        k.srd(16, 74, NBYTES['w_sp'])
        k('''s_and_b32 s4, s35, 3
        s_lshl_b32 s4, s4, 21
        s_lshr_b32 s5, s35, 2
        s_lshl_b32 s5, s5, 20
        s_add_u32 s4, s4, s5
        s_sub_u32 s5, s3, 28
        s_lshl_b32 s5, s5, 18
        s_add_u32 s4, s4, s5
        s_lshl_b32 s5, s30, 15
        s_add_u32 s4, s4, s5
        v_lshlrev_b32 v30, 7, v1
        ''')
        for i in range(prefetch):
            k(f's_add_u32 s5, s4, {i*8192}')
            k(f'buffer_load_dword v{32+i}, v30, s[16:19], s5 offen')
        k('s_waitcnt vmcnt(0)')
    if kidx is not None: stamp_end(k, kidx, 28, 30, extra=[90,90,90,90,90])
    k(f'{name}_end:')
    k('s_endpgm')
    return k

if __name__ == '__main__':
    ks = [gen_k1('k1a_kernel', 0, prefetch=False, dbgstage=True), gen_k1('k1b_kernel', 1, prefetch=False, dbgstage=True)]
    build_file('k1.s', [(k.name, 256, 512, K1_LDS) for k in ks], [k.text(256) for k in ks])
```

```python
from asmlib import *
GS = 260
G_BYTES = 8*GS*16
U_BYTES = 8*48*16
CH_BYTES = G_BYTES + U_BYTES
CONV_LDS = 2*CH_BYTES

def gen_conv_body(k, lds_base):
    k.srd(8, 4, NBYTES['ssm_k'])
    k.srd(12, 28, WS['KVT'][1], WS['KVT'][0])
    k(f'''s_lshl_b32 s33, s2, 1
    s_add_u32 s33, s33, s30          ; ch
    s_lshl_b32 s34, s33, 12          ; ch*4096
    s_mul_i32 s35, s30, {CH_BYTES}
    s_add_u32 s35, s35, {lds_base}   ; CB
    s_add_u32 s36, s35, {G_BYTES}    ; UB
    v_and_b32 v1, 63, v0             ; lane
    v_lshlrev_b32 v2, 4, v1          ; l*16
    ''')
    H = 16
    for it in range(4):
        k(f'buffer_load_dwordx4 {vr(H+4*it,4)}, v2, s[8:11], s34 offen offset:{it*1024} nt')
    k('s_and_b32 s37, s33, -2')
    k('s_lshl_b32 s37, s37, 1')
    k('s_load_dword s38, s[6:7], s37')
    k('v_mov_b32 v4, 0x7fff0000')
    for i in range(6):
        k(f'v_add_u32 v5, {64*i}, v1')
        k('v_mul_u32_u24 v6, 1366, v5')
        k('v_lshrrev_b32 v6, 16, v6')
        k('v_mul_u32_u24 v7, 48, v6')
        k('v_sub_u32 v7, v5, v7')
        k('v_cmp_gt_u32 vcc, 16, v7')
        k('v_lshlrev_b32 v6, 5, v6')
        k('v_add_u32 v6, v6, v7')
        k('v_lshlrev_b32 v6, 4, v6')
        k('v_subrev_u32 v6, 256, v6')
        k(f's_add_u32 m0, s36, {i*1024}')
        k('v_cndmask_b32 v6, v6, v4, vcc')
        k('buffer_load_dwordx4 v6, s[12:15], s34 offen lds')
    k('s_setprio 0')
    k.srd(16, 28, WS['Y2T'][1], WS['Y2T'][0])
    k(f'''v_lshrrev_b32 v9, 2, v1
    v_mul_u32_u24 v9, {GS*16}, v9
    v_and_b32 v10, 3, v1
    v_lshl_add_u32 v9, v10, 4, v9
    v_add_u32 v9, s35, v9
    v_mov_b32 v12, 0
    v_mov_b32 v13, 0
    v_mov_b32 v14, 0
    v_mov_b32 v15, 0
    s_mov_b32 exec_hi, 0
    ds_write_b128 v9, v[12:15]
    s_mov_b64 exec, -1
    v_add_u32 v9, s35, v2            ; CB + l*16
    s_mov_b32 s39, 0xffff
    ''')
    E0, E1, O0, O1 = 48, 57, 64, 73
    PV = 12
    for it in range(4):
        k(f's_waitcnt vmcnt({6 + 3 - it})')
        C = H + 4*it
        for d in range(4):
            if it: k(f'v_readlane_b32 s{40+d}, v{C-4+d}, 63')
        for d in range(4):
            k(f'v_mov_b32_dpp v{PV+d}, v{C+d} wave_shr:1 row_mask:0xf bank_mask:0xf')
        for d in range(4):
            if it: k(f'v_writelane_b32 v{PV+d}, s{40+d}, 0')
        def Dr(j): return PV + j if j < 4 else C + j - 4
        def R(i, dst):
            if i % 2: k(f'v_alignbit_b32 v{dst}, v{Dr((i-1)//2)}, v{Dr((i-1)//2)}, 16')
            else: k(f'v_bfi_b32 v{dst}, s39, v{Dr(i//2)}, v{Dr(i//2-1)}')
        for x in range(0, 6): R(14-2*x, E0+x)
        for x in range(1, 7): R(14-2*x, E1+x)
        for x in range(0, 6): R(15-2*x, O0+x)
        for x in range(1, 7): R(15-2*x, O1+x)
        for c in range(8):
            if c % 2 == 0:
                x0 = (6-c)//2; base = E0 if x0 % 2 == 0 else E1
            else:
                x0 = (7-c)//2; base = O0 if x0 % 2 == 0 else O1
            assert (base + x0) % 2 == 0
            k(f'ds_write_b128 v9, {vr(base+x0,4)} offset:{(c*GS + 4 + 64*it)*16}')
    k(f'''v_and_b32 v10, 7, v1             ; i%8
    v_mul_u32_u24 v10, {GS}, v10
    v_bfe_u32 v11, v1, 3, 1          ; i/8
    v_add_u32 v10, v10, v11
    v_lshrrev_b32 v11, 4, v1         ; kg
    v_sub_u32 v10, v10, v11
    v_lshlrev_b32 v10, 4, v10
    s_add_u32 s40, s35, 64
    v_add_u32 v10, s40, v10
    v_mul_u32_u24 v12, 48, v11
    v_and_b32 v13, 15, v1            ; n
    v_add_u32 v12, v12, v13
    v_lshlrev_b32 v12, 4, v12
    v_add_u32 v11, s36, v12
    s_waitcnt vmcnt(0) lgkmcnt(0)
    ''')
    ACC = 80
    def acc(ct, rt): return ACC + (ct*4+rt)*4
    NA = 8; AB = 112
    NB = 3; BB = 144
    def af(w): return AB + (w % NA)*4
    def bfr(t, ct): return BB + (((t+1) % NB)*2 + ct)*4
    def reads(t):
        out = []
        for w in (2*t+2, 2*t+3):
            if w <= 127: out.append(f'ds_read_b128 {vr(af(w),4)}, v10 offset:{32*w}')
        for ct in range(2):
            if ct == 0 and t > 30: continue
            if t % 2 == 0:
                a = t//2; imm = (16*ct - a + 16)*16
            else:
                a = (t-1)//2; imm = (4*48 + 16*ct - a - 1 + 16)*16
            out.append(f'ds_read_b128 {vr(bfr(t,ct),4)}, v11 offset:{imm}')
        return out
    T = 63
    for l in reads(-1) + reads(0): k(l)
    started = set()
    for t in range(-1, T):
        nxt = reads(t+2) if t+2 < T else []
        n1 = len(reads(t+1)) if t+1 < T else 0
        if t == -1:
            nx1 = reads(1)
            for l in nx1: k(l)
            k(f's_waitcnt lgkmcnt({n1 + len(nx1)})')
        else:
            for l in nxt: k(l)
            k(f's_waitcnt lgkmcnt({n1 + len(nxt)})')
        for ct in (1, 0):
            if ct == 0 and t > 30: continue
            for rt in range(4):
                w = 2*t + rt
                if w < 0: continue
                c = vr(acc(ct,rt),4) if (ct, rt) in started else '0'
                started.add((ct, rt))
                k(f'v_mfma_f32_16x16x32_bf16 {vr(acc(ct,rt),4)}, {vr(af(w),4)}, {vr(bfr(t,ct),4)}, {c}')
    k(f'''v_lshrrev_b32 v12, 5, v1         ; g/2
    v_mul_u32_u24 v12, 48, v12
    v_add_u32 v12, v12, v13
    v_lshlrev_b32 v12, 4, v12
    v_bfe_u32 v14, v1, 4, 1
    v_lshl_add_u32 v12, v14, 3, v12
    v_add_u32 v12, s36, v12
    ''')
    UQ = 16
    for ct in range(2):
        for rt in range(4):
            k(f'ds_read_b64 {vr(UQ+(ct*4+rt)*2,2)}, v12 offset:{(2*rt*48 + 16*ct + 16)*16}')
    k(f'''v_mul_u32_u24 v14, 144, v13
    v_lshrrev_b32 v15, 4, v1
    v_lshl_add_u32 v14, v15, 3, v14
    v_add_u32 v14, s35, v14
    s_lshl_b32 s40, s38, 16
    s_and_b32 s41, s38, 0xffff0000
    s_bitcmp1_b32 s33, 0
    s_cselect_b32 s40, s41, s40      ; D as f32
    s_mov_b32 s42, 0xffff0000
    s_waitcnt lgkmcnt(0)
    ''')
    for ct in range(2):
        for rt in range(4):
            a = acc(ct, rt); u = UQ + (ct*4+rt)*2
            for h in range(2):
                k(f'v_lshlrev_b32 v40, 16, v{u+h}')
                k(f'v_and_b32 v41, s42, v{u+h}')
                k(f'v_fmac_f32 v{a+2*h}, s40, v40')
                k(f'v_fmac_f32 v{a+2*h+1}, s40, v41')
                k(f'v_cvt_pk_bf16_f32 v{u+h}, v{a+2*h}, v{a+2*h+1}')
            k(f'ds_write_b64 v14, {vr(u,2)} offset:{ct*16*144 + rt*32}')
    k(f'''v_lshrrev_b32 v15, 3, v1
    v_mul_u32_u24 v15, 144, v15
    v_and_b32 v12, 7, v1
    v_lshl_add_u32 v15, v12, 4, v15
    v_add_u32 v15, s35, v15
    s_waitcnt lgkmcnt(0)
    ''')
    for z in range(4): k(f'ds_read_b128 {vr(48+4*z,4)}, v15 offset:{z*8*144}')
    for z in range(4):
        k(f's_waitcnt lgkmcnt({3-z})')
        k(f'buffer_store_dwordx4 {vr(48+4*z,4)}, v2, s[16:19], s34 offen offset:{z*1024}')
```

```python
from asmlib import *
from k1 import f32, GC1, GC2

def gen_gemm2_body(k, lds_base=0, zflags='', wflags='', no_mfma=False, no_epi=False, rot=8, stamps=None, lead=0):
    ACC = 16; ZB = 128; WB = 212
    def acc(ft, j): return ACC + (ft*4 + j)*4
    def zf(b, ft): return ZB + b*28 + ft*4
    def wf(b, j): return WB + b*16 + j*4
    def stamp(i):
        if stamps is not None:
            k(f's_memtime s[{70+2*i}:{71+2*i}]')
            k('s_waitcnt lgkmcnt(0)')
            stamps.append(70+2*i)
    k.srd(8, 4, NBYTES['w_sp'])
    k.srd(12, 28, WS['Z2F'][1], WS['Z2F'][0])
    k.srd(16, 28, WS['Z1F'][1], WS['Z1F'][0])
    k.srd(20, 28, WS['PF'][1], WS['PF'][0])
    k.srd(24, 6, NBYTES['b_sp'])
    k('''s_and_b32 s31, s2, 7
    s_lshr_b32 s32, s2, 3
    s_and_b32 s33, s31, 3
    s_lshl_b32 s33, s33, 3
    s_and_b32 s34, s32, 7
    s_add_u32 s33, s33, s34          ; tb
    s_lshr_b32 s34, s31, 2
    s_lshl_b32 s34, s34, 2
    s_lshr_b32 s35, s32, 3
    s_add_u32 s34, s34, s35          ; cb
    v_and_b32 v1, 63, v0             ; lane
    v_and_b32 v2, 15, v0             ; l%16
    v_lshrrev_b32 v3, 4, v1          ; l/16
    v_lshlrev_b32 v4, 4, v1          ; l*16 (Z0)
    v_add_u32 v5, 0x1000, v4         ; Z1
    ; DMA source (even instr: rows 0-7 of tile, odd: rows 8-15): row8 = l/8, pos = l%8, chunk = pos ^ ((row>>1)&7)
    v_xor_b32 v10, v3, v1
    v_and_b32 v10, 7, v10
    v_lshrrev_b32 v11, 3, v1         ; row8
    v_lshlrev_b32 v11, 12, v11
    v_lshl_add_u32 v6, v10, 4, v11
    v_xor_b32 v7, 64, v6
    v_add_u32 v7, 0x8000, v7         ; + 8 rows
    s_lshl_b32 s35, s33, 18          ; tb*64*4096
    v_add_u32 v6, s35, v6
    v_add_u32 v7, s35, v7
    v_lshrrev_b32 v11, 1, v2
    v_xor_b32 v11, v11, v3
    v_lshlrev_b32 v11, 4, v11
    v_lshl_add_u32 v11, v2, 7, v11
    ''')
    k(f's_lshl_b32 s60, s30, 14')
    if lds_base: k(f's_add_u32 s60, s60, {lds_base}')
    k('v_add_u32 v12, s60, v11')
    k('v_xor_b32 v13, 64, v12')
    if lead:
        k('s_add_u32 s66, s33, s34')
        k('s_add_u32 s66, s66, s30')
        k('s_and_b32 s66, s66, 3')
    else:
        k('s_mov_b32 s66, s30')
    for j in range(4):
        k(f's_xor_b32 s36, s30, {j}')
        k(f's_lshl_b32 s36, s36, 16')
        k(f's_lshl_b32 s37, s66, 7')
        k(f's_add_u32 s{62+j}, s36, s37')
    k('s_mul_i32 s38, s66, 114688')
    k('s_mul_i32 s39, s34, 7168')
    k('s_add_u32 s38, s38, s39')
    k('s_add_u32 s61, s34, s33')
    if lead:
        k('s_cmp_eq_u32 s30, 0')
        k(f's_cselect_b32 s61, 0, {8-lead}')
    def phase(p, sd):
        if rot == 0: return [f's_mov_b32 s{sd}, {p}']
        o = [f's_add_u32 s{sd}, s61, {p % rot}', f's_and_b32 s{sd}, s{sd}, {rot-1}']
        if p // rot: o.append(f's_add_u32 s{sd}, s{sd}, {(p//rot)*rot}')
        return o
    def dma_pre(B):
        return phase(B, 41) + ['s_lshl_b32 s41, s41, 9']
    def dma_item(B, i):
        j, h = i // 2, i % 2
        o = [f's_add_u32 m0, s60, {(B%2)*8192 + j*2048 + h*1024}']
        o.append(f's_add_u32 s42, s41, s{62+j}' if h == 0 else 's_nop 0')
        o.append(f'buffer_load_dwordx4 v{6+h}, s[8:11], s42 offen {wflags} lds')
        return o
    def zl_pre(q):
        out = phase(q//2, 40)
        out.append(f's_mul_i32 s40, s40, {8*57344}')
        out.append('s_add_u32 s40, s40, s38')
        if q % 2: out.append('s_add_u32 s40, s40, 57344')
        return out
    def zl_item(q, ft):
        return [f'buffer_load_dwordx4 {vr(zf(q%3,ft),4)}, v{4 + ft//4}, s[12:15], s40 offen offset:{(ft%4)*1024} {zflags}']
    def rd(q):
        B, h = q // 2, q % 2
        return [f'ds_read_b128 {vr(wf(q%2,j),4)}, v{12+h} offset:{(B%2)*8192 + j*2048}' for j in range(4)]
    Z1R = [244, 246, 248, 250, 252, 254, 14]
    BREG = 11
    def epi_loads():
        k('s_lshl_b32 s41, s33, 2')
        k('s_add_u32 s41, s41, s30')
        k('s_mul_i32 s42, s41, 28672')
        k('s_mul_i32 s43, s34, 7')
        for ft in range(7):
            k(f's_add_u32 s44, s43, {ft}')
            k(f's_lshr_b32 s45, s44, 1')
            k(f's_lshl_b32 s45, s45, 10')
            k(f's_and_b32 s44, s44, 1')
            k(f's_lshl_b32 s44, s44, 3')
            k(f's_add_u32 s45, s45, s44')
            k(f's_add_u32 s{50+ft}, s45, s42')
            k(f'buffer_load_dwordx2 {vr(Z1R[ft],2)}, v4, s[16:19], s{50+ft} offen')
        k('s_lshl_b32 s46, s41, 5')
        k('v_lshlrev_b32 v10, 1, v2')
        k(f'buffer_load_ushort v{BREG}, v10, s[24:27], s46 offen')
        k('s_mov_b32 s49, 0xffff0000')
        k(f's_mov_b32 s47, {f32(GC1)}')
        k(f'v_mov_b32 v3, {f32(GC2)}')
    def gelu_ops(z):
        return [f'v_lshlrev_b32 v0, 16, v{z}', f'v_and_b32 v1, s49, v{z}',
                'v_mul_f32 v8, v0, v0', 'v_mul_f32 v9, v1, v1', 'v_fma_f32 v8, v8, v3, s47', 'v_fma_f32 v9, v9, v3, s47',
                'v_mul_f32 v8, v8, v0', 'v_mul_f32 v9, v9, v1', 'v_exp_f32 v8, v8', 'v_exp_f32 v9, v9', None,
                'v_add_f32 v8, 1.0, v8', 'v_add_f32 v9, 1.0, v9', 'v_rcp_f32 v8, v8', 'v_rcp_f32 v9, v9', None,
                'v_mul_f32 v0, v0, v8', 'v_mul_f32 v1, v1, v9', f'v_cvt_pk_bf16_f32 v{z}, v0, v1']
    seq = []
    def issue(tag, lines, n):
        for l in lines: k(l)
        seq.append((tag, n))
    def wait_for(tag):
        idx = max(i for i, (t, n) in enumerate(seq) if t == tag)
        k(f's_waitcnt vmcnt({sum(n for t, n in seq[idx+1:])})')
    def full_dma(B):
        for l in dma_pre(B): k(l)
        for i in range(8): issue(f'D{B}', dma_item(B, i), 1)
    def full_z(q):
        for l in zl_pre(q): k(l)
        for ft in range(7): issue(f'Z{q}_{ft}', zl_item(q, ft), 1)
    full_dma(0); full_z(0); full_z(1)
    full_dma(1)
    if not no_epi:
        epi_loads(); seq.append(('E', 8))
    full_z(2)
    stamp(0)
    wait_for('D0')
    stamp(1)
    for l in rd(0): k(l)
    NQ = 16
    for q in range(NQ):
        if q % 2 == 1 and q + 1 < NQ: wait_for(f'D{(q+1)//2}')
        if q + 1 < NQ:
            for l in rd(q+1): k(l)
            k('s_waitcnt lgkmcnt(4)')
        else:
            k('s_waitcnt lgkmcnt(0)')
        doD = (q % 2 == 1 and (q+3)//2 < 8)
        doZ = q + 3 < NQ
        if doD:
            for l in dma_pre((q+3)//2): k(l)
        if doZ:
            for l in zl_pre(q+3): k(l)
        if q == 2 and not no_epi: wait_for('E')
        go = gelu_ops(Z1R[(q-2)//2] + (q-2) % 2) if (2 <= q and not no_epi) else []
        b = q % 3
        last = q == NQ-1
        order = [(ft, j) for ft in range(7) for j in range(4)] if not last else [(ft, j) for j in (3, 1, 2, 0) for ft in range(7)]
        if last:
            wait_for(f'Z{q}_6')
            k(f'v_add_u32 v10, s60, v4')
        for n, (ft, j) in enumerate(order):
            if not last and j == 0: wait_for(f'Z{q}_{ft}')
            c = '0' if q == 0 else vr(acc(ft,j),4)
            k(f'v_mfma_f32_16x16x32_bf16 {vr(acc(ft,j),4)}, {vr(zf(b,ft),4)}, {vr(wf(q%2,j),4)}, {c}')
            if go:
                o = go.pop(0)
                if o: k(o)
            if last and not no_epi and n >= 8 and n - 8 < 14:
                m = n - 8
                k(f'ds_write_b128 v10, {vr(acc(m%7, (3,1)[m//7]),4)} offset:{m*1024}')
            if doD and j == 1: issue(f'D{(q+3)//2}', dma_item((q+3)//2, ft), 1)
            if doD and n == 27: issue(f'D{(q+3)//2}', dma_item((q+3)//2, 7), 1)
            if doZ and j == 3: issue(f'Z{q+3}_{ft}', zl_item(q+3, ft), 1)
        if q == 7: stamp(2)
    stamp(3)
    if no_epi: return
    T = ZB + 28
    k(f's_xor_b32 s48, s60, 0x4000')
    k(f's_xor_b32 s47, s60, 0xc000')
    k(f'v_add_u32 v12, s48, v4')
    k(f'v_add_u32 v13, s47, v4')
    k(f'v_lshlrev_b32 v{BREG}, 16, v{BREG}')
    k('s_waitcnt lgkmcnt(0)')
    k('s_barrier')
    for i in range(14):
        k(f'ds_read_b128 {vr(T+4*i,4)}, v12 offset:{i*1024}')
    for ft in range(7):
        k(f's_waitcnt lgkmcnt({13})' if ft == 0 else f's_waitcnt lgkmcnt(13)')
        for r in range(4):
            k(f'v_add_f32 v{acc(ft,2)+r}, v{acc(ft,2)+r}, v{T+4*ft+r}')
        k(f'ds_write_b128 v12, {vr(acc(ft,2),4)} offset:{ft*1024}')
    k('s_waitcnt lgkmcnt(0)')
    k('s_barrier')
    T2 = ZB
    for ft in range(7):
        k(f'ds_read_b128 {vr(T2+4*ft,4)}, v13 offset:{ft*1024}')
    for ft in range(7):
        for r in range(4):
            k(f'v_add_f32 v{acc(ft,0)+r}, v{acc(ft,0)+r}, v{T+4*(7+ft)+r}')
            k(f'v_add_f32 v{acc(ft,0)+r}, v{acc(ft,0)+r}, v{BREG}')
    for ft in range(7):
        a = acc(ft, 0)
        k(f's_waitcnt lgkmcnt({6-ft})')
        for r in range(4):
            k(f'v_add_f32 v{a+r}, v{a+r}, v{T2+4*ft+r}')
        for h in range(2):
            z = Z1R[ft] + h
            k(f'v_lshlrev_b32 v0, 16, v{z}')
            k(f'v_and_b32 v1, s49, v{z}')
            k(f'v_mul_f32 v0, v0, v{a+2*h}')
            k(f'v_mul_f32 v1, v1, v{a+2*h+1}')
            k(f'v_cvt_pk_bf16_f32 v{z}, v0, v1')
        k(f'buffer_store_dwordx2 {vr(Z1R[ft],2)}, v4, s[20:23], s{50+ft} offen')
    stamp(4)

def gen_k2_only(name='k2_kernel', kidx=0, **kw):
    k = Kern(name)
    stamp_begin(k)
    k('s_cmp_ge_u32 s2, 256')
    k(f's_cbranch_scc1 {name}_end')
    k(f's_load_dwordx2 s[4:5], s[0:1], {KA["w_sp"]}')
    k(f's_load_dwordx2 s[6:7], s[0:1], {KA["b_sp"]}')
    k(f's_load_dwordx2 s[28:29], s[0:1], {KA["ws"]}')
    k('v_lshrrev_b32 v1, 6, v0')
    k('s_nop 0')
    k('v_readfirstlane_b32 s30, v1')
    k('s_waitcnt lgkmcnt(0)')
    st = []
    gen_gemm2_body(k, stamps=st, **kw)
    stamp_end(k, kidx, 28, 30, extra=st)
    k(f'{name}_end:')
    k('s_endpgm')
    return k

if __name__ == '__main__':
    ks = []
    for rot in (0, 8):
        for nm, kw in [('full', {}), ('noepi', dict(no_epi=True)), ('nomfma', dict(no_epi=True, no_mfma=True))]:
            ks.append(gen_k2_only(f'k2{nm}_r{rot}_kernel', kidx=len(ks), rot=rot, **kw))
    build_file('k2.s', [(k.name, 256, 256, 65536) for k in ks], [k.text(256) for k in ks])
```

```python
from asmlib import *
from k1 import Seq, f32

def gen_k3(name='k3_kernel', kidx=None):
    k = Kern(name)
    stamps = []
    def stamp(i):
        if kidx is not None:
            k(f's_memtime s[{70+2*i}:{71+2*i}]')
            k('s_waitcnt lgkmcnt(0)')
            stamps.append(70+2*i)
    if kidx is not None: stamp_begin(k)
    k('s_cmp_ge_u32 s2, 224')
    k(f's_cbranch_scc1 {name}_end')
    k(f's_load_dwordx2 s[4:5], s[0:1], {KA["q"]}')
    k(f's_load_dwordx2 s[6:7], s[0:1], {KA["out"]}')
    k(f's_load_dwordx2 s[28:29], s[0:1], {KA["ws"]}')
    k('''v_lshrrev_b32 v1, 6, v0
    v_and_b32 v2, 63, v0             ; lane
    v_readfirstlane_b32 s35, v1      ; wave
    s_and_b32 s31, s2, 7
    s_lshr_b32 s32, s2, 3
    s_and_b32 s33, s32, 3
    s_and_b32 s34, s31, 3
    s_lshl_b32 s34, s34, 3
    s_add_u32 s33, s33, s34
    s_lshr_b32 s34, s31, 2
    s_lshl_b32 s34, s34, 2
    s_add_u32 s33, s33, s34          ; tb = 8*(xcd&3) + 4*(xcd>>2) + j%4
    s_lshr_b32 s34, s32, 2           ; db
    s_and_b32 s30, s35, 3            ; w
    v_lshlrev_b32 v4, 4, v2          ; l*16
    s_cmp_ge_u32 s35, 4
    ''')
    k(f's_cbranch_scc1 {name}_gemm')
    YT = 65536; TR = 73728
    k('''v_lshrrev_b32 v6, 3, v2          ; l/8  (row8)
    v_and_b32 v7, 7, v2              ; l%8  (octet)
    v_lshlrev_b32 v8, 12, v6
    v_lshl_add_u32 v8, v7, 4, v8
    s_lshl_b32 s40, s34, 18          ; db*64*4096
    s_lshl_b32 s41, s30, 16          ; w*16*4096
    s_add_u32 s40, s40, s41
    s_lshl_b32 s41, s33, 7
    s_add_u32 s40, s40, s41
    s_add_u32 s41, s40, 0x8000
    s_lshl_b32 s42, s30, 11
    v_mul_u32_u24 v9, 896, v6
    v_lshl_add_u32 v9, v7, 4, v9
    s_lshl_b32 s43, s33, 6
    s_lshl_b32 s44, s30, 4
    s_add_u32 s43, s43, s44          ; row0
    s_mul_i32 s44, s43, 896
    s_lshl_b32 s45, s34, 7
    s_add_u32 s44, s44, s45          ; soffset h=0
    s_add_u32 s45, s44, 7168         ; h=1
    s_lshl_b32 s46, s43, 3
    v_lshlrev_b32 v10, 3, v6
    s_waitcnt lgkmcnt(0)
    ''')
    k.srd(16, 28, WS['Y2T'][1], WS['Y2T'][0])
    k.srd(20, 28, WS['ST1'][1], WS['ST1'][0])
    k.srd(24, 4, NBYTES['q'])
    k.srd(36, 6, NBYTES['out'])
    k(f'''s_add_u32 m0, s42, {YT}
    s_nop 0
    buffer_load_dwordx4 v8, s[16:19], s40 offen lds
    s_add_u32 m0, s42, {YT+1024}
    s_nop 0
    buffer_load_dwordx4 v8, s[16:19], s41 offen lds
    buffer_load_dwordx4 v[12:15], v9, s[24:27], s44 offen
    buffer_load_dwordx4 v[16:19], v9, s[24:27], s45 offen
    buffer_load_dwordx2 v[20:21], v10, s[20:23], s46 offen
    buffer_load_dwordx2 v[22:23], v10, s[20:23], s46 offen offset:64
    v_lshrrev_b32 v24, 2, v2
    v_lshlrev_b32 v24, 7, v24
    v_and_b32 v25, 3, v2
    v_lshl_add_u32 v24, v25, 3, v24
    s_lshl_b32 s48, s30, 5
    s_add_u32 s48, s48, {YT}
    v_add_u32 v24, s48, v24
    ; write addr: TRw + (l%16)*144 + (16i + 4g)*2
    v_and_b32 v25, 15, v2
    v_mul_u32_u24 v25, 144, v25
    v_lshrrev_b32 v3, 4, v2
    v_lshl_add_u32 v25, v3, 3, v25
    s_mul_i32 s48, s30, 2304
    s_add_u32 s48, s48, {TR}
    v_add_u32 v25, s48, v25
    v_mul_u32_u24 v26, 144, v6
    v_lshl_add_u32 v26, v7, 4, v26
    v_add_u32 v26, s48, v26
    ; partial read addr: tile (j=w, i=oct/2), g = 2*(oct%2)+gg, t = 8h + l/8
    v_lshrrev_b32 v27, 1, v7
    v_lshlrev_b32 v27, 10, v27
    v_and_b32 v28, 1, v7
    v_lshl_add_u32 v27, v28, 9, v27
    v_lshl_add_u32 v27, v6, 4, v27
    s_lshl_b32 s48, s30, 12
    v_add_u32 v27, s48, v27
    s_mov_b32 s49, 0xffff0000
    s_mov_b32 s50, {f32(-1.4426950408889634)}
    s_mov_b32 s51, {f32(-1.4426950408889634)}
    s_mov_b32 s52, 1.0
    s_mov_b32 s53, 1.0
    s_waitcnt vmcnt(4)
    s_barrier
    ''')
    for i in range(4): k(f'ds_read_b64_tr_b16 v[{32+2*i}:{33+2*i}], v24 offset:{i*2048}')
    for i in range(4):
        k(f's_waitcnt lgkmcnt({3})')
        k(f'ds_write_b64 v25, v[{32+2*i}:{33+2*i}] offset:{i*32}')
    k('s_waitcnt lgkmcnt(0)')
    k('ds_read_b128 v[32:35], v26')
    k(f'ds_read_b128 v[36:39], v26 offset:{8*144}')
    k('s_waitcnt vmcnt(0)')
    X = 40; S = 56
    for h in range(2):
        for d in range(4):
            k(f'v_lshlrev_b32 v{X+8*h+2*d}, 16, v{12+4*h+d}')
            k(f'v_and_b32 v{X+8*h+2*d+1}, s49, v{12+4*h+d}')
    k('s_waitcnt lgkmcnt(0)')
    for h in range(2):
        m, r = 20+2*h, 21+2*h
        for d in range(4):
            k(f'v_lshlrev_b32 v28, 16, v{32+4*h+d}')
            k(f'v_and_b32 v29, s49, v{32+4*h+d}')
            for e in range(2):
                s = S+8*h+2*d+e
                k(f'v_sub_f32 v{s}, v{X+8*h+2*d+e}, v{m}')
                k(f'v_mul_f32 v{s}, v{s}, v{r}')
                k(f'v_mul_f32 v{s}, v{s}, v{28+e}')
    stamp(0)
    k('s_barrier')
    stamp(1)
    R = 72
    for h in range(2):
        for p in range(4):
            for gg in range(2):
                k(f'ds_read_b128 {vr(R + ((h*4+p)*2+gg)*4, 4)}, v27 offset:{p*16384 + gg*256 + h*128}')
    for h in range(2):
        k(f's_waitcnt lgkmcnt({8 if h == 0 else 0})')
        b = R + h*32
        P = range(4)
        for d in P:
            k(f'v_pk_add_f32 {vr(b+2*d,2)}, {vr(b+2*d,2)}, {vr(b+8+2*d,2)}')
            k(f'v_pk_add_f32 {vr(b+16+2*d,2)}, {vr(b+16+2*d,2)}, {vr(b+24+2*d,2)}')
        for d in P: k(f'v_pk_add_f32 {vr(b+2*d,2)}, {vr(b+2*d,2)}, {vr(b+16+2*d,2)}')
        for d in P: k(f'v_pk_mul_f32 {vr(b+8+2*d,2)}, {vr(b+2*d,2)}, s[50:51]')
        for e in range(8): k(f'v_exp_f32 v{b+8+e}, v{b+8+e}')
        for d in P: k(f'v_pk_mul_f32 {vr(b+2*d,2)}, {vr(b+2*d,2)}, {vr(S+8*h+2*d,2)}')
        for d in P: k(f'v_pk_add_f32 {vr(b+8+2*d,2)}, {vr(b+8+2*d,2)}, s[52:53]')
        for e in range(8): k(f'v_rcp_f32 v{b+8+e}, v{b+8+e}')
        k('s_nop 0')
        for d in P: k(f'v_pk_fma_f32 {vr(b+2*d,2)}, {vr(b+2*d,2)}, {vr(b+8+2*d,2)}, {vr(X+8*h+2*d,2)}')
        for d in P: k(f'v_cvt_pk_bf16_f32 v{b+16+d}, v{b+2*d}, v{b+2*d+1}')
        k(f'buffer_store_dwordx4 {vr(b+16,4)}, v9, s[36:39], s{44+h} offen')
    stamp(2)
    if kidx is not None: stamp_end(k, kidx, 28, 35, extra=stamps)
    k('s_endpgm')
    k(f'{name}_gemm:')
    stamps = []
    k('''s_and_b32 s46, s33, 3
    s_lshl_b32 s46, s46, 1
    s_add_u32 s46, s46, s34          ; rho < 13
    s_cmp_ge_u32 s46, 7
    s_cselect_b32 s47, 7, 0
    s_sub_u32 s46, s46, s47
    ''')
    for q in range(7):
        k('s_lshl_b32 s47, s46, 10')
        k(f'v_add_u32 v{232+q}, s47, v4')
        if q < 6:
            k('s_add_u32 s46, s46, 1')
            k('s_cmp_eq_u32 s46, 7')
            k('s_cselect_b32 s46, 0, s46')
    k('s_mul_i32 s47, s30, 7168')
    for i in range(4):
        k(f's_lshl_b32 s48, s34, 2')
        k(f's_add_u32 s48, s48, {i}')
        k(f's_mul_i32 s48, s48, 28672')
        k(f's_add_u32 s{50+i}, s48, s47')
        k(f's_lshl_b32 s48, s33, 2')
        k(f's_add_u32 s48, s48, {i}')
        k(f's_mul_i32 s48, s48, 28672')
        k(f's_add_u32 s{54+i}, s48, s47')
    k('s_lshl_b32 s48, s30, 14')
    k('v_add_u32 v6, s48, v4')
    k('s_waitcnt lgkmcnt(0)')
    k.srd(8, 28, WS['PF'][1], WS['PF'][0])
    k.srd(12, 28, WS['WOF'][1], WS['WOF'][0])
    ACC = 8; FB = 72; NBUF = 5
    def acc(i, j): return ACC + (i*4+j)*4
    def wf(q, i): return FB + (q % NBUF)*32 + i*4
    def pf(q, j): return FB + (q % NBUF)*32 + 16 + j*4
    Q = Seq(k)
    def items(q):
        o = []
        for i in range(4):
            o.append((f'L{q}', [f'buffer_load_dwordx4 {vr(pf(q,i),4)}, v{232+q}, s[8:11], s{54+i} offen']))
            o.append((f'L{q}', [f'buffer_load_dwordx4 {vr(wf(q,i),4)}, v{232+q}, s[12:15], s{50+i} offen']))
        return o
    for q in range(2):
        for t, l in items(q): Q.issue(t, l, 1)
    k('s_barrier')
    for q in range(2, 4):
        for t, l in items(q): Q.issue(t, l, 1)
    stamp(0)
    for q in range(7):
        Q.wait_for(f'L{q}')
        pend = items(q+4) if q + 4 < 7 else []
        n = 0
        for j in range(4):
            for i in range(4):
                c = '0' if q == 0 else vr(acc(i,j),4)
                k(f'v_mfma_f32_16x16x32_bf16 {vr(acc(i,j),4)}, {vr(wf(q,i),4)}, {vr(pf(q,j),4)}, {c}')
                if pend and n % 2 == 1:
                    t, l = pend.pop(0); Q.issue(t, l, 1)
                if q == 6 and n >= 8:
                    m = n - 8
                    k(f'ds_write_b128 v6, {vr(acc(m%4, m//4),4)} offset:{m*1024}')
                n += 1
    k('s_nop 4')
    for m in range(8, 16):
        k(f'ds_write_b128 v6, {vr(acc(m%4, m//4),4)} offset:{m*1024}')
    stamp(1)
    k('s_waitcnt lgkmcnt(0)')
    k('s_barrier')
    if kidx is not None: stamp_end(k, kidx, 28, 35, extra=stamps)
    k(f'{name}_end:')
    k('s_endpgm')
    return k
K3_LDS = 73728 + 4*2304
K3_VGPR = dict(vgpr=240)
K3_BLOCK = 512
```

```python
import sys
from asmlib import *
from k1 import gen_k1, K1_LDS
from k2_gemm import gen_gemm2_body
from k2_conv import gen_conv_body, CONV_LDS
from k3 import gen_k3, K3_LDS, K3_VGPR

def gen_k2(name='k2_kernel', kidx=None, **kw):
    k = Kern(name)
    if kidx is not None: stamp_begin(k)
    k('s_cmp_ge_u32 s2, 256')
    k(f's_cbranch_scc1 {name}_end')
    k(f's_load_dwordx2 s[28:29], s[0:1], {KA["ws"]}')
    k('v_lshrrev_b32 v1, 6, v0')
    k('s_nop 0')
    k('v_readfirstlane_b32 s30, v1')
    k('s_cmp_ge_u32 s30, 4')
    k(f's_cbranch_scc1 {name}_conv')
    k(f's_load_dwordx4 s[4:7], s[0:1], {KA["w_sp"]}')
    k('s_waitcnt lgkmcnt(0)')
    st = [] if kidx is not None else None
    gen_gemm2_body(k, stamps=st, **kw)
    if kidx is not None: stamp_end(k, kidx, 28, 30, extra=st)
    k('s_endpgm')
    k(f'{name}_conv:')
    k('s_cmp_ge_u32 s2, 224')
    k(f's_cbranch_scc1 {name}_wof')
    k(f's_load_dwordx4 s[4:7], s[0:1], {KA["ssm_k"]}')
    k('s_setprio 3')
    k('s_mov_b32 s89, s30')
    k('s_sub_u32 s30, s30, 4')
    k('s_waitcnt lgkmcnt(0)')
    gen_conv_body(k, 65536)
    if kidx is not None: stamp_end(k, kidx, 28, 89)
    k('s_endpgm')
    k(f'{name}_wof:')
    k('s_cmp_ge_u32 s2, 252')
    k(f's_cbranch_scc1 {name}_end')
    k(f's_load_dwordx2 s[4:5], s[0:1], {KA["w_out"]}')
    k('''s_setprio 3
    s_sub_u32 s30, s30, 4
    s_sub_u32 s33, s2, 224
    v_and_b32 v1, 63, v0
    s_mul_i32 s35, s30, 28672
    s_add_u32 s35, s35, 65536
    v_lshlrev_b32 v4, 4, v1
    s_mul_i32 s34, s33, 28672
    s_waitcnt lgkmcnt(0)
    ''')
    k.srd(8, 4, NBYTES['w_out'])
    k.srd(12, 28, WS['WOF'][1], WS['WOF'][0])
    for i in range(14):
        k(f'v_add_u32 v5, {64*i}, v1')
        k('v_mul_u32_u24 v6, 2341, v5')
        k('v_lshrrev_b32 v6, 16, v6')
        k('v_mul_u32_u24 v7, 28, v6')
        k('v_add_u32 v5, v5, v7')
        k('v_lshlrev_b32 v5, 4, v5')
        k(f's_add_u32 m0, s35, {i*1024}')
        k('s_mul_i32 s36, s30, 448')
        k('s_add_u32 s36, s36, s34')
        k('buffer_load_dwordx4 v5, s[8:11], s36 offen nt lds')
    k('''v_lshrrev_b32 v5, 2, v1
    v_mul_u32_u24 v5, 448, v5
    v_and_b32 v6, 3, v1
    v_lshl_add_u32 v5, v6, 3, v5
    v_add_u32 v5, s35, v5
    s_mul_i32 s36, s30, 401408       ; 14*28672
    s_lshl_b32 s37, s33, 10
    s_add_u32 s36, s36, s37
    s_waitcnt vmcnt(0)
    ''')
    for i in range(14):
        r = 8 + 4*(i % 4)
        k(f'ds_read_b64_tr_b16 v[{r}:{r+1}], v5 offset:{i*32}')
        k(f'ds_read_b64_tr_b16 v[{r+2}:{r+3}], v5 offset:{i*32 + 16*448}')
        k(f's_add_u32 s37, s36, {i*28672}')
        k('s_waitcnt lgkmcnt(0)')
        k(f'buffer_store_dwordx4 v[{r}:{r+3}], v4, s[12:15], s37 offen')
    k(f'{name}_end:')
    k('s_endpgm')
    return k

def build(path, ts, kw2={}, **kw):
    k1 = gen_k1('k1_kernel', 0 if ts else None, **kw)
    k2 = gen_k2('k2_kernel', 1 if ts else None, **kw2)
    k3 = gen_k3('k3_kernel', 2 if ts else None)
    build_file(path, [('k1_kernel', 256, 512, K1_LDS), ('k2_kernel', 256, 384, 65536 + CONV_LDS), ('k3_kernel', 224, 512, K3_LDS)],
               [k1.text(256), k2.text(256), k3.text(**K3_VGPR)])
DEF = dict(kw2=dict(rot=0), prefetch=0)
if __name__ == '__main__':
    build('full_ts.s', True, **DEF)
    build('recurrent_scan__ssm_conv_h3__mixer_gmlp__prompt.s', False, **DEF)
```

```python
from asmlib import *
import struct
def f32(x): return '0x%08x' % struct.unpack('<I', struct.pack('<f', x))[0]
EPOCH_OFF = 16*4*28*512
SLOT = 24576; WZ1 = 98304; SCR = 155648
XS2 = SCR; CSF = SCR + 1024; CSP = SCR + 3072
K1_LDS = SCR + 1024 + 2048 + 2048
SPIN_MAX = 1 << 14
GC1 = -2*0.7978845608028654*1.4426950408889634
GC2 = GC1*0.044715

def round_bf16_single(k, dst, src):
    k(f'v_cvt_pk_bf16_f32 v{dst}, v{src}, v{src}')
    k(f'v_lshlrev_b32 v{dst}, 16, v{dst}')

def ln_stats(k, S1, S2, n, MB, RS, T):
    k(f'v_mul_f32 v{MB}, {f32(1.0/n)}, v{S1}')
    k(f'v_mul_f32 v{T}, {f32(1.0/n)}, v{S2}')
    k(f'v_fma_f32 v{T}, -v{MB}, v{MB}, v{T}')
    k(f'v_max_f32 v{T}, 0, v{T}')
    round_bf16_single(k, T, T)
    k(f'v_add_f32 v{T}, {f32(1e-5)}, v{T}')
    round_bf16_single(k, T, T)
    k(f'v_sqrt_f32 v{T}, v{T}')
    round_bf16_single(k, MB, MB)
    round_bf16_single(k, T, T)
    k(f'v_rcp_f32 v{RS}, v{T}')
    k('s_nop 0')

class Seq:
    def __init__(self, k): self.k = k; self.seq = []
    def issue(self, tag, lines, n):
        for l in lines: self.k(l)
        self.seq.append((tag, n))
    def wait_for(self, tag):
        idx = max(i for i, (t, n) in enumerate(self.seq) if t == tag)
        self.k(f's_waitcnt vmcnt({sum(n for t, n in self.seq[idx+1:])})')
    def copy(self):
        s = Seq(self.k); s.seq = list(self.seq); return s

def gen_k1(name='k1_kernel', kidx=None, prefetch=4, dbgstage=False, rotate=True, pf2=None, pfflags='', pfz=None, w1s=(5,5,5,5,6,6,6,6), cpf=True, wof=False):
    k = Kern(name)
    def mkstamp(lst):
        def stamp(i, stage=False):
            if kidx is not None and stage == dbgstage:
                k(f's_memtime s[{80+2*i}:{81+2*i}]')
                k('s_waitcnt lgkmcnt(0)')
                lst.append(80+2*i)
        return stamp
    if kidx is not None: stamp_begin(k)
    k('s_cmp_ge_u32 s2, 256')
    k(f's_cbranch_scc1 {name}_end')
    k('s_load_dwordx8 s[64:71], s[0:1], 0')
    if cpf:
        lab = k.label('cpf')
        k(f'''s_getpc_b64 s[40:41]
        {name}_pc:
        s_sub_u32 s40, s40, {name}_pc-{name}
        s_subb_u32 s41, s41, 0
        s_lshr_b32 s3, s2, 3
        s_lshl_b32 s3, s3, 10
        v_lshlrev_b32 v1, 7, v0
        v_add_u32 v1, s3, v1
        v_cmp_gt_u32 vcc, 8, v0
        s_and_saveexec_b64 s[42:43], vcc
        s_cbranch_execz {lab}
        global_load_dword v255, v1, s[40:41]
        {lab}:
        s_mov_b64 exec, -1
        ''')
    k(f's_load_dwordx4 s[72:75], s[0:1], {KA["w_in"]}')
    k(f's_load_dwordx4 s[76:79], s[0:1], {KA["dbg"]}')
    k('''v_lshrrev_b32 v1, 6, v0
    v_and_b32 v2, 31, v0             ; l%32
    v_readfirstlane_b32 s30, v1      ; wave
    v_and_b32 v1, 63, v0             ; lane
    v_lshrrev_b32 v3, 5, v1          ; hi
    s_and_b32 s31, s30, 3            ; sg
    s_lshr_b32 s32, s30, 2           ; role
    s_and_b32 s35, s2, 7             ; xcd
    s_lshr_b32 s3, s2, 3             ; j
    s_cmp_ge_u32 s3, 28
    ''')
    k(f's_cbranch_scc1 {name}_aux')
    k('''s_mul_i32 s33, s3, 37
    s_lshr_b32 s33, s33, 8           ; j/7
    s_mul_i32 s34, s33, 7
    s_sub_u32 s34, s3, s34           ; j%7
    s_lshl_b32 s4, s33, 1
    s_add_u32 s4, s4, s34
    s_add_u32 s4, s4, s35            ; rot = j%7 + 2*(j/7) + xcd  (< 21)
    s_and_b32 s7, s35, 3
    s_lshl_b32 s7, s7, 2
    s_add_u32 s33, s33, s7
    s_lshr_b32 s7, s35, 2
    s_mul_i32 s7, s7, 7
    s_add_u32 s34, s34, s7           ; cb = 7*(xcd>>2) + j%7
    v_lshrrev_b32 v28, 3, v1         ; l/8
    v_lshrrev_b32 v29, 4, v1         ; l>>4
    v_xor_b32 v30, v29, v1
    v_and_b32 v30, 7, v30            ; x chunk (h=0)
    v_mul_u32_u24 v7, 896, v28
    v_lshl_add_u32 v4, v30, 4, v7
    v_xor_b32 v30, 4, v30
    v_lshl_add_u32 v5, v30, 4, v7
    v_add_u32 v5, 7168, v5
    v_and_b32 v29, 1, v29
    v_lshlrev_b32 v29, 2, v29
    v_xor_b32 v30, v29, v1
    v_and_b32 v30, 7, v30            ; w chunk
    v_mul_u32_u24 v6, 3584, v28
    v_lshl_add_u32 v6, v30, 4, v6
    s_mul_i32 s44, s30, 28672        ; 8*w*3584
    s_add_u32 s44, s44, 1792
    v_add_u32 v126, s44, v6
    s_lshl_b32 s7, s33, 7
    s_lshl_b32 s5, s30, 4
    s_add_u32 s7, s7, s5
    s_mul_i32 s6, s7, 896
    s_lshl_b32 s44, s34, 7
    s_lshl_b32 s61, s30, 11          ; w*2048
    s_lshl_b32 s45, s30, 10          ; w*1024
    ''')
    for _ in range(2):
        k('s_cmp_ge_u32 s4, 7')
        k('s_cselect_b32 s5, 7, 0')
        k('s_sub_u32 s4, s4, s5')
    if not rotate: k('s_mov_b32 s4, 0')
    XO = [16, 17, 18, 19, 20, 21, 22]; WO = [23, 24, 25, 26, 27, 46, 47]
    for pos in range(7):
        k(f's_lshl_b32 s5, s4, 7')
        k(f's_add_u32 s{XO[pos]}, s5, s6')
        k(f's_mul_i32 s5, s4, {64*3584}')
        k(f's_add_u32 s{WO[pos]}, s5, s44')
        if pos < 6:
            k('s_add_u32 s4, s4, 1')
            k('s_cmp_eq_u32 s4, 7')
            k('s_cselect_b32 s4, 0, s4')
    k('''s_waitcnt lgkmcnt(0)
    s_mov_b32 s28, s78
    s_mov_b32 s29, s79
    ''')
    k.srd(8, 64, NBYTES['q'])
    k.srd(12, 72, NBYTES['w_in'])
    def dma_items(pos):
        slot = pos % 4
        return [(f'D{pos}', [f's_add_u32 m0, s61, {slot*SLOT}', 's_nop 0', f'buffer_load_dwordx4 v4, s[8:11], s{XO[pos]} offen lds']),
                (f'D{pos}', [f's_add_u32 m0, s45, {slot*SLOT + 16384}', 's_nop 0', f'buffer_load_dwordx4 v126, s[12:15], s{WO[pos]} offen lds']),
                (f'D{pos}', [f's_add_u32 m0, s61, {slot*SLOT + 1024}', 's_nop 0', f'buffer_load_dwordx4 v5, s[8:11], s{XO[pos]} offen lds'])]
    Q = Seq(k)
    for pos in range(2):
        for tag, l in dma_items(pos): Q.issue(tag, l, 1)
        if pos == 0: k('s_barrier')
    def mk_queue(extra):
        q = []
        for pos in range(2, 7):
            for tag, l in dma_items(pos): q.append((max(0, pos-3), tag, l))
        return q + extra
    def pump(Qx, q, st, n=1):
        for _ in range(n):
            if q and q[0][0] <= st:
                _, tag, l = q.pop(0)
                Qx.issue(tag, l, 1)
    k('''v_lshrrev_b32 v28, 1, v2
    v_and_b32 v28, 7, v28            ; f(row)
    v_xor_b32 v28, v28, v3           ; ^hi
    v_lshlrev_b32 v28, 4, v28
    v_lshl_add_u32 v28, v2, 7, v28
    s_lshl_b32 s5, s31, 12           ; sg*32*128
    v_add_u32 v8, s5, v28
    v_xor_b32 v9, 32, v8
    v_xor_b32 v10, 64, v8
    v_xor_b32 v11, 0x60, v8
    v_add_u32 v12, 0xc000, v8
    v_add_u32 v13, 0xc000, v9
    v_add_u32 v14, 0xc000, v10
    v_add_u32 v15, 0xc000, v11
    v_bfe_u32 v29, v1, 2, 2          ; r
    v_lshl_add_u32 v30, v3, 3, v29   ; 8kg + r
    v_lshlrev_b32 v30, 7, v30
    v_and_b32 v25, 3, v1
    v_lshlrev_b32 v25, 3, v25        ; 8c
    v_bfe_u32 v24, v1, 4, 1          ; fhalf
    v_lshl_add_u32 v26, v24, 5, v25
    v_lshrrev_b32 v27, 1, v29        ; r>>1
    v_lshl_add_u32 v26, v27, 6, v26
    v_add_u32 v16, v30, v26          ; p=0
    v_xor_b32 v17, 64, v16           ; p=1
    s_mov_b32 s60, 0xffff0000
    s_cmp_eq_u32 s32, 1
    ''')
    k(f's_cbranch_scc1 {name}_z1')
    ACC = 32; CSR = 64
    def colsum_fetch(part):
        k(f'''v_lshlrev_b32 v96, 4, v1
        v_add_u32 v96, {CSP + part*1024}, v96
        ds_read_b128 v[64:67], v96
        s_lshl_b32 s4, s30, 8
        s_add_u32 s4, s4, {CSF}
        v_lshlrev_b32 v96, 2, v1
        v_add_u32 v96, s4, v96
        v_lshlrev_b32 v97, 4, v3
        v_add_u32 v97, s4, v97
        s_waitcnt lgkmcnt(0)
        v_add_f32 v64, v64, v65
        v_add_f32 v66, v66, v67
        v_add_f32 v64, v64, v66
        ds_write_b32 v96, v64
        s_waitcnt lgkmcnt(0)
        ''')
        for p in range(2):
            for j in range(4):
                k(f'ds_read_b128 {vr(CSR+16*p+4*j,4)}, v97 offset:{p*128 + j*32}')
    st2 = []; stamp = mkstamp(st2)
    Q2 = Q.copy()
    q2 = mk_queue([])
    k.srd(56, 76, 256)
    k('''v_add_u32 v18, 0x10000, v16      ; slots 2,3 : 49152 + 16384
    v_add_u32 v19, 0x10000, v17
    v_add_u32 v16, 0x4000, v16
    v_add_u32 v17, 0x4000, v17
    v_mov_b32 v221, 0
    ''')
    q2 += [(3, 'EP', ['buffer_load_dword v223, v221, s[56:59], 0 offen sc1'])]
    if pfz is not None:
        k.srd(52, 74, NBYTES['w_sp'])
        k('''s_and_b32 s4, s35, 3
        s_lshl_b32 s4, s4, 21
        s_lshr_b32 s5, s35, 2
        s_lshl_b32 s5, s5, 20
        s_add_u32 s4, s4, s5
        s_lshl_b32 s5, s3, 15
        s_add_u32 s4, s4, s5
        s_lshl_b32 s5, s31, 13
        s_add_u32 s40, s4, s5
        v_lshlrev_b32 v220, 7, v1
        ''')
    if pfz is not None:
        n = len(pfz)
        for i, stg in enumerate(pfz):
            lanes = 64 // n
            m = ((1 << lanes) - 1) << (i*lanes)
            q2.append((stg, 'PF', [f's_mov_b32 exec_lo, {hex(m & 0xffffffff)}', f's_mov_b32 exec_hi, {hex(m >> 32)}',
                                   f'buffer_load_dword v222, v220, s[52:55], s40 offen {pfflags}', 's_mov_b64 exec, -1']))
    FRB = [64, 128]
    def xf(st, ks): return FRB[st % 2] + ks*12
    def wf(st, ks, p): return FRB[st % 2] + ks*12 + 4 + p*4
    stamp(0)
    def mm(st, ks, p):
        first = (st == 0 and ks == 0)
        k(f'v_mfma_f32_32x32x16_bf16 {vr(ACC+16*p,16)}, {vr(wf(st,ks,p),4)}, {vr(xf(st,ks),4)}, {"0" if first else vr(ACC+16*p,16)}')
    for st in range(7):
        slot = st % 4
        hs, so = slot // 2, (slot % 2) * SLOT
        Q2.wait_for(f'D{st}')
        k('s_barrier')
        if st in (0, 1, 2, 4, 6): stamp({0:0, 1:1, 2:2, 4:3, 6:4}[st], True)
        for ks in range(4):
            if st: mm(st-1, ks, 0)
            k(f'ds_read_b128 {vr(xf(st,ks),4)}, v{8+4*hs+ks} offset:{so}')
            for p in range(2):
                for e2 in range(2):
                    k(f'ds_read_b64_tr_b16 {vr(wf(st,ks,p)+2*e2,2)}, v{16+2*hs+p} offset:{so + ks*2048 + e2*512}')
            if st: mm(st-1, ks, 1)
            pump(Q2, q2, st, 2 if st == 0 else 1)
        k('s_waitcnt lgkmcnt(0)')
    for ks in range(4):
        for p in range(2): mm(6, ks, p)
    pump(Q2, q2, 7, 100)
    stamp(1)
    k(f'''s_lshl_b32 s4, s31, 8
    s_add_u32 s4, s4, {XS2}
    v_lshlrev_b32 v102, 3, v2
    v_add_u32 v102, s4, v102
    v_mov_b32 v98, 0
    v_mov_b32 v99, 0
    v_mov_b32 v100, 0
    v_mov_b32 v101, 0
    s_barrier
    ds_read_b64 v[24:25], v102
    ''')
    colsum_fetch(0)
    k(f'''v_mul_f32 v108, v25, v25
    v_mul_f32 v106, {f32(GC1)}, v25
    v_mul_f32 v108, v108, v106
    v_mul_f32 v108, {f32(0.044715)}, v108
    v_sub_f32 v104, 0, v24
    v_sub_f32 v105, 0, v24
    v_mov_b32 v107, v106
    v_mov_b32 v109, v108
    s_mov_b32 s62, 1.0
    s_mov_b32 s63, 1.0
    ''')
    for g in range(4):
        k(f's_waitcnt lgkmcnt({6-2*g})')
        P = [(vr(ACC+2*i,2), vr(CSR+2*i,2), CSR+2*i) for i in range(4*g, 4*g+4)]
        for A, C, c in P: k(f'v_pk_fma_f32 {A}, v[104:105], {C}, {A}')
        for A, C, c in P: k(f'v_pk_mul_f32 {C}, {A}, {A}')
        for A, C, c in P: k(f'v_pk_fma_f32 {C}, {C}, v[108:109], v[106:107]')
        for A, C, c in P: k(f'v_pk_mul_f32 {C}, {C}, {A}')
        for A, C, c in P:
            k(f'v_exp_f32 v{c}, v{c}'); k(f'v_exp_f32 v{c+1}, v{c+1}')
        for A, C, c in P: k(f'v_pk_add_f32 {C}, {C}, s[62:63]')
        for A, C, c in P:
            k(f'v_rcp_f32 v{c}, v{c}'); k(f'v_rcp_f32 v{c+1}, v{c+1}')
        for A, C, c in P: k(f'v_pk_mul_f32 {A}, {A}, {C}')
        for A, C, c in P:
            k(f'v_pk_add_f32 v[98:99], v[98:99], {A}')
            k(f'v_pk_fma_f32 v[100:101], {A}, {A}, v[100:101]')
    k.srd(24, 28, WS['PART'][1], WS['PART'][0])
    k('''v_add_f32 v98, v98, v99
    v_add_f32 v100, v100, v101
    v_mul_f32 v98, v98, v25
    v_mul_f32 v100, v100, v25
    v_mul_f32 v100, v100, v25        ; S2 partial
    v_mov_b32 v99, v98
    v_mov_b32 v101, v100
    v_mov_b32 v103, v25
    ''')
    Q2.wait_for('EP')
    k('''    v_permlane32_swap_b32 v98, v99
    v_permlane32_swap_b32 v100, v101
    s_nop 0
    v_add_f32 v98, v98, v99
    v_add_f32 v100, v100, v101
    ''')
    lp, ok = k.label('eppoll'), k.label('epok')
    k(f's_mov_b32 s5, {SPIN_MAX}')
    k(f'{lp}:')
    k('v_readfirstlane_b32 s61, v223')
    k('s_cmp_lg_u32 s61, 0')
    k(f's_cbranch_scc1 {ok}')
    k('s_sub_u32 s5, s5, 1')
    k('s_cmp_eq_u32 s5, 0')
    k(f's_cbranch_scc1 {ok}')
    k('s_sleep 2')
    k('buffer_load_dword v223, v221, s[56:59], 0 offen sc1')
    k('s_waitcnt vmcnt(0)')
    k(f's_branch {lp}')
    k(f'{ok}:')
    k('''v_mov_b32 v99, s61
    v_mov_b32 v101, s61
    s_lshl_b32 s4, s33, 2
    s_add_u32 s4, s4, s31
    s_mul_i32 s36, s4, 7168          ; (rb*4+sg)*14*512
    s_add_u32 s37, s36, 4096
    s_lshl_b32 s4, s34, 9
    s_add_u32 s4, s4, s36
    v_lshlrev_b32 v97, 4, v1
    s_mov_b32 exec_hi, 0
    buffer_store_dwordx4 v[98:101], v97, s[24:27], s4 offen sc1
    s_mov_b64 exec, -1
    s_barrier
    ''')
    stamp(2)
    k.srd(20, 28, WS['Z2F'][1], WS['Z2F'][0])
    k('''v_mul_u32_u24 v28, 72, v2
    v_lshl_add_u32 v28, v3, 3, v28
    s_mul_i32 s4, s31, 4608
    v_add_u32 v28, s4, v28
    v_lshrrev_b32 v70, 4, v1
    v_bfe_u32 v65, v1, 2, 2
    v_lshl_add_u32 v70, v70, 3, v65
    v_mul_u32_u24 v70, 72, v70
    v_and_b32 v65, 3, v1
    v_lshl_add_u32 v70, v65, 3, v70
    v_add_u32 v70, s4, v70
    s_lshl_b32 s4, s33, 2
    s_add_u32 s4, s4, s31
    s_mul_i32 s4, s4, 57344          ; ks*56*1024
    s_lshl_b32 s5, s34, 12
    s_add_u32 s38, s4, s5
    ''')
    stamp(3)
    G = 128
    lp, ok = k.label('stpoll'), k.label('stok')
    k(f's_mov_b32 s5, {SPIN_MAX}')
    k(f'{lp}:')
    for i in range(7):
        k(f'buffer_load_dwordx4 {vr(G+4*i,4)}, v97, s[24:27], s{36+i//4} offen offset:{(i%4)*1024} sc1')
    k('s_sub_u32 s5, s5, 1')
    k('s_waitcnt vmcnt(0)')
    k(f'v_max3_u32 v64, v{G+1}, v{G+3}, v99')
    k(f'v_min3_u32 v65, v{G+1}, v{G+3}, v99')
    for i in range(1, 7):
        k(f'v_max3_u32 v64, v{G+4*i+1}, v{G+4*i+3}, v64')
        k(f'v_min3_u32 v65, v{G+4*i+1}, v{G+4*i+3}, v65')
    k('v_cmp_ne_u32 vcc, v64, v65')
    k('s_cmp_eq_u32 s5, 0')
    k(f's_cbranch_scc1 {ok}')
    k('s_nop 2')
    k(f's_cbranch_vccz {ok}')
    k('s_sleep 2')
    k(f's_branch {lp}')
    k(f'{ok}:')
    stamp(4)
    for c in (0, 2):
        k(f'v_add_f32 v{G+c}, v{G+c}, v{G+4+c}')
        k(f'v_add_f32 v{G+8+c}, v{G+8+c}, v{G+12+c}')
        k(f'v_add_f32 v{G+16+c}, v{G+16+c}, v{G+20+c}')
        k(f'v_add_f32 v{G+c}, v{G+c}, v{G+24+c}')
        k(f'v_add_f32 v{G+8+c}, v{G+8+c}, v{G+16+c}')
        k(f'v_add_f32 v{G+c}, v{G+c}, v{G+8+c}')
        k(f'v_mov_b32 v{G+c+1}, v{G+c}')
    k(f'''s_nop 1
    v_permlane32_swap_b32 v{G}, v{G+1}
    v_permlane32_swap_b32 v{G+2}, v{G+3}
    s_nop 0
    v_add_f32 v64, v{G}, v{G+1}
    v_add_f32 v65, v{G+2}, v{G+3}
    ''')
    ln_stats(k, 64, 65, 896, 24, 25, 66)
    k('''v_mul_f32 v24, v24, v25          ; m*r
    v_mul_f32 v25, v25, v103         ; r*rs1
    ''')
    for p in range(2):
        for j in range(4):
            for h in range(4):
                a = ACC+16*p+4*j+h
                k(f'v_fma_f32 v{a}, v{a}, v25, -v24')
            for h in range(2):
                a = ACC+16*p+4*j+2*h
                k(f'v_cvt_pk_bf16_f32 v{66+2*((4*p+j)%2)+h}, v{a}, v{a+1}')
            k(f'ds_write_b64 v28, {vr(66+2*((4*p+j)%2),2)} offset:{p*2304 + j*16}')
        k('s_waitcnt lgkmcnt(0)')
        for ftl in range(2):
            for e2 in range(2):
                k(f'ds_read_b64_tr_b16 {vr(128+8*p+4*ftl+2*e2,2)}, v70 offset:{p*2304 + e2*288 + ftl*32}')
    for t in range(4):
        k(f's_waitcnt lgkmcnt({max(0, 2*(3-t)) if t >= 2 else 4})')
        k(f'buffer_store_dwordx4 {vr(128+4*t,4)}, v97, s[20:23], s38 offen offset:{t*1024}')
    if kidx is not None: stamp_end(k, kidx, 28, 30, extra=st2)
    k('s_endpgm')
    k(f'{name}_z1:')
    st1 = []; stamp = mkstamp(st1)
    Q1 = Q.copy()
    w1q = []
    for pos in range(7):
        for h in range(2):
            w1q.append((w1s[len(w1q)] if len(w1q) < len(w1s) else 8, 'W1', [f's_add_u32 m0, s62, {WZ1 + pos*8192 + h*1024}', 's_nop 0', f'buffer_load_dwordx4 v{124+h}, s[12:15], s{WO[pos]} offen lds']))
    q1 = mk_queue(w1q)
    XF = 128
    k(f'''v_add_u32 v16, {WZ1}, v16
    v_add_u32 v17, {WZ1}, v17
    s_mul_i32 s4, s31, 57344         ; 16*sg*3584
    v_add_u32 v124, s4, v6
    v_add_u32 v125, 28672, v124
    s_lshl_b32 s62, s31, 11          ; sg*2048
    v_lshrrev_b32 v26, 4, v1         ; G
    v_lshl_add_u32 v25, v26, 5, v25
    v_lshlrev_b32 v27, 6, v27
    v_xor_b32 v25, v25, v27
    v_lshl_add_u32 v25, v29, 7, v25
    v_add_u32 v120, s62, v25
    v_add_u32 v121, 0x10000, v120    ; slots 2,3 (+16384)
    v_add_u32 v122, 0x18000, v120    ; WZ1
    v_add_u32 v120, 0x4000, v120     ; slots 0,1 (+16384)
    ; selector4: ones if (l%16) == l/16
    v_and_b32 v29, 15, v1
    v_cmp_eq_u32 vcc, v29, v26
    v_mov_b32 v29, 0x3f803f80
    v_bfe_u32 v25, v1, 2, 1
    v_cndmask_b32 v20, 0, v29, vcc
    v_cndmask_b32 v21, 0, v29, vcc
    v_cndmask_b32 v22, 0, v29, vcc
    v_cndmask_b32 v23, 0, v29, vcc
    v_cmp_eq_u32 vcc, v25, v24
    s_lshl_b32 s4, s31, 2
    s_add_u32 s4, s4, {CSP}
    v_cndmask_b32 v116, 0, v29, vcc
    v_cndmask_b32 v117, 0, v29, vcc
    v_cndmask_b32 v118, 0, v29, vcc
    v_cndmask_b32 v119, 0, v29, vcc
    v_lshlrev_b32 v123, 4, v1
    v_add_u32 v123, s4, v123
    ''')
    stamp(0)
    GR = 32; RSUM = 48; CF = [64, 72]
    def xstats(st, pst):
        for ks in range(4):
            x = vr(XF+16*st+4*ks, 4)
            first = (st == 0 and ks == 0)
            k(f'v_mfma_f32_32x32x16_bf16 {vr(GR,16)}, {x}, {x}, {"0" if first else vr(GR,16)}')
            pump(Q1, q1, pst)
            k(f'v_mfma_f32_16x16x32_bf16 {vr(RSUM,4)}, v[116:119], {x}, {"0" if first else vr(RSUM,4)}')
            if ks < 2:
                k(f'v_mfma_f32_16x16x32_bf16 v[24:27], v[20:23], {vr(CF[st%2]+4*ks,4)}, {"0" if first else "v[24:27]"}')
    for st in range(7):
        slot = st % 4
        hs, so = slot // 2, (slot % 2) * SLOT
        if st in (1, 2, 3, 5, 6): stamp({1:0, 2:1, 3:2, 5:3, 6:4}[st], True)
        Q1.wait_for(f'D{st}')
        k('s_barrier')
        for ks in range(4):
            k(f'ds_read_b128 {vr(XF+16*st+4*ks,4)}, v{8+4*hs+ks} offset:{so}')
        for e4 in range(4):
            k(f'ds_read_b64_tr_b16 {vr(CF[st%2]+2*e4,2)}, v{120+hs} offset:{so + e4*512}')
        if st == 0: pump(Q1, q1, st, 6)
        else: xstats(st-1, st)
        k('s_waitcnt lgkmcnt(0)')
    xstats(6, 7)
    pump(Q1, q1, 7, 100)
    stamp(1)
    k('s_mov_b64 exec, 0xffff')
    for i in range(4): k(f'ds_write_b32 v123, v{24+i} offset:{i*256}')
    k('s_mov_b64 exec, -1')
    k('s_nop 7')
    masks = [(0xaaaaaaaa, 1), (0xcccccccc, 2), (0xff00ff00, 4), (0xffff0000, 8)]
    for m, d in masks:
        k(f's_mov_b32 vcc_lo, {hex(m)}')
        k(f's_mov_b32 vcc_hi, {hex(m)}')
        for i in range(0, 16, 2*d):
            k(f'v_cndmask_b32 v{GR+i}, v{GR+i}, v{GR+i+d}, vcc')
    k(f'''s_mov_b32 vcc_lo, 0x0f0f0f0f
    s_mov_b32 vcc_hi, 0xf0f0f0f0
    v_cndmask_b32 v30, 0, v{GR}, vcc
    v_cndmask_b32 v31, 0, v{GR}, vcc
    s_lshl_b32 s4, s31, 8
    s_add_u32 s5, s4, {XS2}
    v_permlane32_swap_b32 v30, v31
    v_lshlrev_b32 v96, 3, v2
    v_add_u32 v97, s5, v96
    v_add_f32 v30, v30, v31
    ''')
    ln_stats(k, RSUM, 30, 448, 98, 99, 29)
    k('''ds_write_b64 v97, v[98:99]
    s_waitcnt lgkmcnt(0)
    s_barrier
    ''')
    pump(Q1, q1, 8, 100)
    lab = k.label('nost')
    k('s_cmp_lg_u32 s34, 0')
    k(f's_cbranch_scc1 {lab}')
    k.srd(52, 28, WS['ST1'][1], WS['ST1'][0])
    k('''s_lshl_b32 s5, s33, 10
    s_add_u32 s4, s4, s5
    s_mov_b32 exec_hi, 0
    buffer_store_dwordx2 v[98:99], v96, s[52:55], s4 offen
    s_mov_b64 exec, -1
    ''')
    k(f'{lab}:')
    k('s_waitcnt vmcnt(0)')
    for half in range(2):
        sts = range(0, 4) if half == 0 else range(4, 7)
        n = 0
        for st in sts:
            for e4 in range(4):
                if n < 14 or True:
                    k(f'ds_read_b64_tr_b16 {vr(32+8*(st%4)+2*e4,2)}, v122 offset:{st*8192 + e4*512}')
                n += 1
        k('s_waitcnt lgkmcnt(0)')
        for st in sts:
            for h in range(2):
                k(f'v_mfma_f32_16x16x32_bf16 v[24:27], v[20:23], {vr(32+8*(st%4)+4*h,4)}, {"0" if (st == 0 and h == 0) else "v[24:27]"}')
    k('s_mov_b64 exec, 0xffff')
    k('s_nop 7')
    for i in range(4): k(f'ds_write_b32 v123, v{24+i} offset:{1024 + i*256}')
    k('''s_mov_b64 exec, -1
    s_waitcnt lgkmcnt(0)
    s_barrier
    ''')
    stamp(2)
    if pf2 is not None:
        k.srd(52, 74, NBYTES['w_sp'])
        k('''s_and_b32 s4, s35, 3
        s_lshl_b32 s4, s4, 21
        s_lshr_b32 s5, s35, 2
        s_lshl_b32 s5, s5, 20
        s_add_u32 s4, s4, s5
        s_lshl_b32 s5, s3, 15
        s_add_u32 s4, s4, s5
        s_lshl_b32 s5, s31, 13
        s_add_u32 s56, s4, s5
        v_lshlrev_b32 v30, 7, v1
        ''')
    def pf_at(q):
        if pf2 is None: return
        for sg, qq in enumerate(pf2):
            if qq == q:
                lab = k.label('pf')
                k(f's_cmp_lg_u32 s31, {sg}')
                k(f's_cbranch_scc1 {lab}')
                k(f'buffer_load_dword v31, v30, s[52:55], s56 offen {pfflags}')
                k(f'{lab}:')
    NB = 3
    def wf1(q, p): return 100 + (q % NB)*8 + p*4
    def reads1(q):
        for p in range(2):
            for e2 in range(2):
                k(f'ds_read_b64_tr_b16 {vr(wf1(q,p)+2*e2,2)}, v{16+p} offset:{q*2048 + e2*512}')
    reads1(0); reads1(1)
    for q in range(28):
        if q == 2:
            colsum_fetch(1)
        if q + 2 < 28:
            reads1(q+2); k('s_waitcnt lgkmcnt(8)' if q != 2 else 's_waitcnt lgkmcnt(12)')
        else:
            k(f's_waitcnt lgkmcnt({4 if q == 26 else 0})')
        for p in range(2):
            k(f'v_mfma_f32_32x32x16_bf16 {vr(ACC+16*p,16)}, {vr(wf1(q,p),4)}, {vr(XF+4*q,4)}, {"0" if q == 0 else vr(ACC+16*p,16)}')
        pf_at(q)
    stamp(3)
    k.srd(16, 28, WS['Z1F'][1], WS['Z1F'][0])
    k(f'''v_sub_f32 v24, 0, v98
    v_sub_f32 v25, 0, v98
    v_mov_b32 v26, v99
    v_mov_b32 v27, v99
    v_bfe_u32 v28, v1, 4, 1
    v_mul_u32_u24 v28, 28672, v28
    v_and_b32 v29, 15, v1
    v_lshl_add_u32 v29, v3, 4, v29
    v_lshl_add_u32 v28, v29, 4, v28
    s_lshl_b32 s4, s33, 2
    s_add_u32 s4, s4, s31
    s_mul_i32 s4, s4, 57344
    s_lshl_b32 s5, s34, 11
    s_add_u32 s4, s4, s5
    s_waitcnt lgkmcnt(0)
    ''')
    om = {0: 0, 1: 1, 4: 2, 5: 3, 2: 4, 3: 5, 6: 6, 7: 7}
    for p in range(2):
        for i in range(8):
            A, C = vr(ACC+16*p+2*i, 2), vr(CSR+16*p+2*i, 2)
            k(f'v_pk_fma_f32 {A}, v[24:25], {C}, {A}')
            k(f'v_pk_mul_f32 {A}, {A}, v[26:27]')
            k(f'v_cvt_pk_bf16_f32 v{100+8*p+om[i]}, v{ACC+16*p+2*i}, v{ACC+16*p+2*i+1}')
        for u in range(2):
            k(f'buffer_store_dwordx4 {vr(100+8*p+4*u,4)}, v28, s[16:19], s4 offen offset:{p*1024 + u*512}')
    stamp(4)
    pf_at(99)
    if kidx is not None: stamp_end(k, kidx, 28, 30, extra=st1)
    k('s_endpgm')
    k(f'{name}_aux:')
    if cpf:
        lab = k.label('cpf2')
        k(f'''v_lshlrev_b32 v4, 7, v0
        v_cmp_gt_u32 vcc, code_end-{name}, v4
        s_and_saveexec_b64 s[42:43], vcc
        s_cbranch_execz {lab}
        global_load_dword v254, v4, s[40:41]
        {lab}:
        s_mov_b64 exec, -1
        ''')
    k('''s_sub_u32 s6, s3, 28
    s_lshl_b32 s34, s35, 2
    s_add_u32 s33, s34, s6           ; a = xcd*4 + (j-28)
    s_waitcnt lgkmcnt(0)
    s_mov_b32 s28, s78
    s_mov_b32 s29, s79
    s_cmp_lg_u32 s33, 28
    ''')
    lne = k.label('noep')
    k(f's_cbranch_scc1 {lne}')
    k('s_cmp_lg_u32 s30, 7')
    k(f's_cbranch_scc1 {lne}')
    k.srd(24, 28, WS['PART'][1], WS['PART'][0])
    k.srd(56, 76, 256)
    k(f'''v_mov_b32 v4, {EPOCH_OFF}
    v_mov_b32 v5, 0
    s_mov_b64 exec, 1
    buffer_load_dword v6, v4, s[24:27], 0 offen sc1
    s_mov_b32 s4, 1664525
    s_waitcnt vmcnt(0)
    v_mul_lo_u32 v6, v6, s4
    v_add_u32 v6, 1013904223, v6
    v_max_u32 v6, 1, v6
    buffer_store_dword v6, v5, s[56:59], 0 offen sc1
    buffer_store_dword v6, v4, s[24:27], 0 offen sc1
    s_mov_b64 exec, -1
    ''')
    k(f'{lne}:')
    k('s_cmp_ge_u32 s33, 28')
    k(f's_cbranch_scc1 {name}_aux2')
    k.srd(36, 66, NBYTES['k'])
    k.srd(40, 68, NBYTES['v'])
    k.srd(48, 70, NBYTES['shift_k'])
    k.srd(44, 28, WS['KVT'][1], WS['KVT'][0])
    VB = 520*128
    k(f'''s_mul_i32 s52, s33, 37
    s_lshr_b32 s52, s52, 8           ; sq
    s_mul_i32 s53, s52, 7
    s_sub_u32 s53, s33, s53          ; dbk
    ; DMA: wave w loads s-block w (64 rows = 8 instr) of k and v ; chunk' = (l%8) ^ w
    v_lshrrev_b32 v4, 3, v1
    v_mul_u32_u24 v4, 896, v4
    v_xor_b32 v5, s30, v1
    v_and_b32 v5, 7, v5
    v_lshl_add_u32 v4, v5, 4, v4
    s_lshl_b32 s54, s52, 9
    s_lshl_b32 s4, s30, 6
    s_add_u32 s54, s54, s4
    s_mul_i32 s54, s54, 896
    s_lshl_b32 s4, s53, 7
    s_add_u32 s54, s54, s4           ; soffset
    s_lshl_b32 s55, s30, 13          ; w*64*128
    ''')
    for i in range(8):
        k(f's_add_u32 m0, s55, {1024 + i*1024}')
        k(f's_add_u32 s4, s54, {i*7168}')
        k('buffer_load_dwordx4 v4, s[36:39], s4 offen nt lds')
        k(f's_add_u32 m0, s55, {VB + i*1024}')
        k('s_nop 0')
        k('buffer_load_dwordx4 v4, s[40:43], s4 offen nt lds')
    lh = k.label('nohalo')
    k('s_cmp_lg_u32 s30, 0')
    k(f's_cbranch_scc1 {lh}')
    k('''v_xor_b32 v6, 0x70, v4
    s_sub_u32 s4, s54, 7168
    v_add_u32 v6, s4, v6
    s_mov_b32 m0, 0
    s_nop 0
    buffer_load_dwordx4 v6, s[36:39], 0 offen lds
    ''')
    k(f'{lh}:')
    KR = 16; VR = 84; W = 150
    k(f'''; lane = (c8 = l/8, r8 = l%8): channel 8w + c8, s-block r8
    v_lshrrev_b32 v6, 3, v1          ; c8
    v_and_b32 v7, 7, v1              ; r8
    s_lshl_b32 s4, s53, 6
    s_lshl_b32 s5, s30, 3
    s_add_u32 s4, s4, s5             ; ch0
    v_add_u32 v8, s4, v6             ; ch
    v_lshlrev_b32 v9, 3, v8
    buffer_load_dwordx2 v[{W}:{W+1}], v9, s[48:51], 0 offen
    v_lshlrev_b32 v9, 12, v8
    v_lshl_add_u32 v9, v7, 4, v9
    s_lshl_b32 s52, s52, 7           ; sq*8*16
    v_xor_b32 v10, s30, v7
    v_lshlrev_b32 v10, 4, v10
    v_lshl_add_u32 v10, v6, 1, v10
    v_lshl_add_u32 v10, v7, 13, v10
    v_add_u32 v11, 7, v7
    v_and_b32 v11, 7, v11            ; (r8-1)&7
    v_xor_b32 v11, s30, v11
    v_lshlrev_b32 v11, 4, v11
    v_lshl_add_u32 v11, v6, 1, v11
    v_lshl_add_u32 v11, v7, 13, v11
    v_add_u32 v12, {VB}, v10
    s_mov_b32 s60, 0xffff0000
    ''')
    for i in range(67+64+1): k(f'v_mov_b32 v{KR+i}, 0')
    k('s_waitcnt vmcnt(0)')
    k('s_barrier')
    k(f'''v_lshlrev_b32 v{W+2}, 16, v{W}
    v_and_b32 v{W+3}, s60, v{W}
    v_lshlrev_b32 v{W+4}, 16, v{W+1}
    v_and_b32 v{W+5}, s60, v{W+1}
    ''')
    for j in range(3): k(f'ds_read_u16_d16_hi v{KR+j}, v11 offset:{(5+j)*128}')
    def kvreads(col):
        for j in range(8):
            k(f'ds_read_u16_d16_hi v{KR+3+8*col+j}, v10 offset:{1024 + (8*col+j)*128}')
        for j in range(8):
            k(f'ds_read_u16_d16_hi v{VR+8*col+j}, v12 offset:{(8*col+j)*128}')
    kvreads(0)
    for col in range(8):
        k('s_waitcnt lgkmcnt(0)')
        if col < 7: kvreads(col+1)
        T = 160
        for i in range(8):
            b = KR + 8*col + i
            k(f'v_mul_f32 v{T+i}, v{b}, v{W+5}')
            k(f'v_fmac_f32 v{T+i}, v{b+1}, v{W+4}')
            k(f'v_fmac_f32 v{T+i}, v{b+2}, v{W+3}')
            k(f'v_fmac_f32 v{T+i}, v{b+3}, v{W+2}')
            k(f'v_mul_f32 v{T+i}, v{T+i}, v{VR+8*col+i}')
        O = 168 + 4*(col % 2)
        for q in range(4): k(f'v_cvt_pk_bf16_f32 v{O+q}, v{T+2*q}, v{T+2*q+1}')
        k(f'buffer_store_dwordx4 {vr(O,4)}, v9, s[44:47], s52 offen offset:{col*512}')
    k(f's_branch {name}_aux3')
    k(f'{name}_aux2:')
    if wof:
        k('s_cmp_eq_u32 s30, 7')
        k(f's_cbranch_scc1 {name}_aux3')
        k(f's_load_dwordx2 s[4:5], s[0:1], {KA["w_out"]}')
        k('''s_sub_u32 s36, s33, 28
        s_mul_i32 s36, s36, 7
        s_add_u32 s36, s36, s30          ; fp
        s_mul_i32 s37, s30, 14336
        s_mul_i32 s38, s36, 28672
        v_lshlrev_b32 v4, 4, v1
        v_lshrrev_b32 v5, 2, v1
        v_mul_u32_u24 v5, 448, v5
        v_and_b32 v6, 3, v1
        v_lshl_add_u32 v5, v6, 3, v5
        v_add_u32 v5, s37, v5
        s_lshl_b32 s39, s36, 10
        ''')
        for i in range(14):
            k(f'v_add_u32 v{32+i}, {64*i}, v1')
            k(f'v_mul_u32_u24 v6, 2341, v{32+i}')
            k('v_lshrrev_b32 v6, 16, v6')
            k('v_mul_u32_u24 v7, 28, v6')
            k(f'v_add_u32 v{32+i}, v{32+i}, v7')
            k(f'v_lshlrev_b32 v{32+i}, 4, v{32+i}')
        k('s_waitcnt lgkmcnt(0)')
        k.srd(8, 4, NBYTES['w_out'])
        k.srd(12, 28, WS['WOF'][1], WS['WOF'][0])
        k('s_mov_b32 s6, 0')
        lw = k.label('wofl')
        k(f'{lw}:')
        for i in range(14):
            k(f's_add_u32 m0, s37, {i*1024}')
            k('s_nop 0')
            k(f'buffer_load_dwordx4 v{32+i}, s[8:11], s38 offen lds')
        k('s_waitcnt vmcnt(0)')
        for i in range(14):
            r = 8 + 4*(i % 4)
            k(f'ds_read_b64_tr_b16 v[{r}:{r+1}], v5 offset:{i*32}')
            k(f'ds_read_b64_tr_b16 v[{r+2}:{r+3}], v5 offset:{i*32 + 16*448}')
            k(f's_add_u32 s7, s39, {i*28672}')
            k('s_waitcnt lgkmcnt(0)')
            k(f'buffer_store_dwordx4 v[{r}:{r+3}], v4, s[12:15], s7 offen')
        k('''s_add_u32 s38, s38, 448
        s_add_u32 s39, s39, 401408
        s_add_u32 s6, s6, 1
        s_cmp_lt_u32 s6, 2
        ''')
        k(f's_cbranch_scc1 {lw}')
    k(f'{name}_aux3:')
    if pf2 is not None or pfz is not None:
        k.srd(16, 74, NBYTES['w_sp'])
        k('''s_and_b32 s4, s35, 3
        s_lshl_b32 s4, s4, 21
        s_lshr_b32 s5, s35, 2
        s_lshl_b32 s5, s5, 20
        s_add_u32 s4, s4, s5
        s_lshl_b32 s5, s3, 15
        s_add_u32 s4, s4, s5
        s_lshl_b32 s5, s31, 13
        s_add_u32 s4, s4, s5
        v_lshlrev_b32 v30, 7, v1
        ''')
        k(f'buffer_load_dword v32, v30, s[16:19], s4 offen {pfflags}')
    if prefetch:
        k.srd(16, 74, NBYTES['w_sp'])
        k('''s_and_b32 s4, s35, 3
        s_lshl_b32 s4, s4, 21
        s_lshr_b32 s5, s35, 2
        s_lshl_b32 s5, s5, 20
        s_add_u32 s4, s4, s5
        s_sub_u32 s5, s3, 28
        s_lshl_b32 s5, s5, 18
        s_add_u32 s4, s4, s5
        s_lshl_b32 s5, s30, 15
        s_add_u32 s4, s4, s5
        v_lshlrev_b32 v30, 7, v1
        ''')
        for i in range(prefetch):
            k(f's_add_u32 s5, s4, {i*8192}')
            k(f'buffer_load_dword v{32+i}, v30, s[16:19], s5 offen')
        k('s_waitcnt vmcnt(0)')
    if kidx is not None: stamp_end(k, kidx, 28, 30, extra=[90,90,90,90,90])
    k(f'{name}_end:')
    k('s_endpgm')
    return k

if __name__ == '__main__':
    ks = [gen_k1('k1a_kernel', 0, prefetch=False, dbgstage=True), gen_k1('k1b_kernel', 1, prefetch=False, dbgstage=True)]
    build_file('k1.s', [(k.name, 256, 512, K1_LDS) for k in ks], [k.text(256) for k in ks])
```

```python
from asmlib import *
GS = 260
G_BYTES = 8*GS*16
U_BYTES = 8*48*16
CH_BYTES = G_BYTES + U_BYTES
CONV_LDS = 2*CH_BYTES

def gen_conv_body(k, lds_base, fused=False, prio=0):
    k.srd(8, 4, NBYTES['ssm_k'])
    k.srd(12, 28, WS['KVT'][1], WS['KVT'][0])
    k(f'''s_lshl_b32 s33, s2, 1
    s_add_u32 s33, s33, s30          ; ch
    s_lshl_b32 s34, s33, 12          ; ch*4096
    s_mul_i32 s35, s30, {CH_BYTES}
    s_add_u32 s35, s35, {lds_base}   ; CB
    s_add_u32 s36, s35, {G_BYTES}    ; UB
    v_and_b32 v1, 63, v0             ; lane
    v_lshlrev_b32 v2, 4, v1          ; l*16
    ''')
    H = 16
    for it in range(4):
        k(f'buffer_load_dwordx4 {vr(H+4*it,4)}, v2, s[8:11], s34 offen offset:{it*1024} nt')
    k('s_and_b32 s37, s33, -2')
    k('s_lshl_b32 s37, s37, 1')
    k('s_load_dword s38, s[6:7], s37')
    k('v_mov_b32 v4, 0x7fff0000')
    for i in range(6):
        k(f'v_add_u32 v5, {64*i}, v1')
        k('v_mul_u32_u24 v6, 1366, v5')
        k('v_lshrrev_b32 v6, 16, v6')
        k('v_mul_u32_u24 v7, 48, v6')
        k('v_sub_u32 v7, v5, v7')
        k('v_cmp_gt_u32 vcc, 16, v7')
        k('v_lshlrev_b32 v6, 5, v6')
        k('v_add_u32 v6, v6, v7')
        k('v_lshlrev_b32 v6, 4, v6')
        k('v_subrev_u32 v6, 256, v6')
        k(f's_add_u32 m0, s36, {i*1024}')
        k('v_cndmask_b32 v6, v6, v4, vcc')
        k('buffer_load_dwordx4 v6, s[12:15], s34 offen lds')
    k(f's_setprio {prio}')
    k.srd(16, 28, WS['Y2T'][1], WS['Y2T'][0])
    k(f'''v_lshrrev_b32 v9, 2, v1
    v_mul_u32_u24 v9, {GS*16}, v9
    v_and_b32 v10, 3, v1
    v_lshl_add_u32 v9, v10, 4, v9
    v_add_u32 v9, s35, v9
    v_mov_b32 v12, 0
    v_mov_b32 v13, 0
    v_mov_b32 v14, 0
    v_mov_b32 v15, 0
    s_mov_b32 exec_hi, 0
    ds_write_b128 v9, v[12:15]
    s_mov_b64 exec, -1
    v_add_u32 v9, s35, v2            ; CB + l*16
    s_mov_b32 s39, 0xffff
    ''')
    E0, E1, O0, O1 = 48, 57, 64, 73
    PV = 12
    for it in range(4):
        k(f's_waitcnt vmcnt({6 + 3 - it})')
        C = H + 4*it
        for d in range(4):
            if it: k(f'v_readlane_b32 s{40+d}, v{C-4+d}, 63')
        for d in range(4):
            k(f'v_mov_b32_dpp v{PV+d}, v{C+d} wave_shr:1 row_mask:0xf bank_mask:0xf')
        for d in range(4):
            if it: k(f'v_writelane_b32 v{PV+d}, s{40+d}, 0')
        def Dr(j): return PV + j if j < 4 else C + j - 4
        def R(i, dst):
            if i % 2: k(f'v_alignbit_b32 v{dst}, v{Dr((i-1)//2)}, v{Dr((i-1)//2)}, 16')
            else: k(f'v_bfi_b32 v{dst}, s39, v{Dr(i//2)}, v{Dr(i//2-1)}')
        for x in range(0, 6): R(14-2*x, E0+x)
        for x in range(1, 7): R(14-2*x, E1+x)
        for x in range(0, 6): R(15-2*x, O0+x)
        for x in range(1, 7): R(15-2*x, O1+x)
        for c in range(8):
            if c % 2 == 0:
                x0 = (6-c)//2; base = E0 if x0 % 2 == 0 else E1
            else:
                x0 = (7-c)//2; base = O0 if x0 % 2 == 0 else O1
            assert (base + x0) % 2 == 0
            k(f'ds_write_b128 v9, {vr(base+x0,4)} offset:{(c*GS + 4 + 64*it)*16}')
    k(f'''v_and_b32 v10, 7, v1             ; i%8
    v_mul_u32_u24 v10, {GS}, v10
    v_bfe_u32 v11, v1, 3, 1          ; i/8
    v_add_u32 v10, v10, v11
    v_lshrrev_b32 v11, 4, v1         ; kg
    v_sub_u32 v10, v10, v11
    v_lshlrev_b32 v10, 4, v10
    s_add_u32 s40, s35, 64
    v_add_u32 v10, s40, v10
    v_mul_u32_u24 v12, 48, v11
    v_and_b32 v13, 15, v1            ; n
    v_add_u32 v12, v12, v13
    v_lshlrev_b32 v12, 4, v12
    v_add_u32 v11, s36, v12
    s_waitcnt vmcnt(0) lgkmcnt(0)
    ''')
    ACC = 80
    def acc(ct, rt): return ACC + (ct*4+rt)*4
    NA = 8; AB = 112
    NB = 3; BB = 144
    def af(w): return AB + (w % NA)*4
    def bfr(t, ct): return BB + (((t+1) % NB)*2 + ct)*4
    def reads(t):
        out = []
        for w in (2*t+2, 2*t+3):
            if w <= 127: out.append(f'ds_read_b128 {vr(af(w),4)}, v10 offset:{32*w}')
        for ct in range(2):
            if ct == 0 and t > 30: continue
            if t % 2 == 0:
                a = t//2; imm = (16*ct - a + 16)*16
            else:
                a = (t-1)//2; imm = (4*48 + 16*ct - a - 1 + 16)*16
            out.append(f'ds_read_b128 {vr(bfr(t,ct),4)}, v11 offset:{imm}')
        return out
    T = 63
    for l in reads(-1) + reads(0): k(l)
    started = set()
    for t in range(-1, T):
        nxt = reads(t+2) if t+2 < T else []
        n1 = len(reads(t+1)) if t+1 < T else 0
        if t == -1:
            nx1 = reads(1)
            for l in nx1: k(l)
            k(f's_waitcnt lgkmcnt({n1 + len(nx1)})')
        else:
            for l in nxt: k(l)
            k(f's_waitcnt lgkmcnt({n1 + len(nxt)})')
        for ct in (1, 0):
            if ct == 0 and t > 30: continue
            for rt in range(4):
                w = 2*t + rt
                if w < 0: continue
                c = vr(acc(ct,rt),4) if (ct, rt) in started else '0'
                started.add((ct, rt))
                k(f'v_mfma_f32_16x16x32_bf16 {vr(acc(ct,rt),4)}, {vr(af(w),4)}, {vr(bfr(t,ct),4)}, {c}')
    k(f'''v_lshrrev_b32 v12, 5, v1         ; g/2
    v_mul_u32_u24 v12, 48, v12
    v_add_u32 v12, v12, v13
    v_lshlrev_b32 v12, 4, v12
    v_bfe_u32 v14, v1, 4, 1
    v_lshl_add_u32 v12, v14, 3, v12
    v_add_u32 v12, s36, v12
    ''')
    UQ = 16
    for ct in range(2):
        for rt in range(4):
            k(f'ds_read_b64 {vr(UQ+(ct*4+rt)*2,2)}, v12 offset:{(2*rt*48 + 16*ct + 16)*16}')
    k(f'''v_mul_u32_u24 v14, 144, v13
    v_lshrrev_b32 v15, 4, v1
    v_lshl_add_u32 v14, v15, 3, v14
    v_add_u32 v14, s35, v14
    s_lshl_b32 s40, s38, 16
    s_and_b32 s41, s38, 0xffff0000
    s_bitcmp1_b32 s33, 0
    s_cselect_b32 s40, s41, s40      ; D as f32
    s_mov_b32 s42, 0xffff0000
    s_waitcnt lgkmcnt(0)
    ''')
    for ct in range(2):
        for rt in range(4):
            a = acc(ct, rt); u = UQ + (ct*4+rt)*2
            for h in range(2):
                k(f'v_lshlrev_b32 v40, 16, v{u+h}')
                k(f'v_and_b32 v41, s42, v{u+h}')
                k(f'v_fmac_f32 v{a+2*h}, s40, v40')
                k(f'v_fmac_f32 v{a+2*h+1}, s40, v41')
                k(f'v_cvt_pk_bf16_f32 v{u+h}, v{a+2*h}, v{a+2*h+1}')
            k(f'ds_write_b64 v14, {vr(u,2)} offset:{ct*16*144 + rt*32}')
    k(f'''v_lshrrev_b32 v15, 3, v1
    v_mul_u32_u24 v15, 144, v15
    v_and_b32 v12, 7, v1
    v_lshl_add_u32 v15, v12, 4, v15
    v_add_u32 v15, s35, v15
    s_waitcnt lgkmcnt(0)
    ''')
    for z in range(4): k(f'ds_read_b128 {vr(48+4*z,4)}, v15 offset:{z*8*144}')
    for z in range(4):
        k(f's_waitcnt lgkmcnt({3-z})')
        k(f'buffer_store_dwordx4 {vr(48+4*z,4)}, v2, s[16:19], s34 offen offset:{z*1024} {"sc1" if fused else ""}')
    if fused:
        k.srd(8, 28, WS['FLG'][1], WS['FLG'][0])
        k('''s_lshl_b32 s40, s33, 2
        s_add_u32 s40, s40, 4096
        v_mov_b32 v4, 0
        v_mov_b32 v5, s59
        s_waitcnt vmcnt(0)
        s_mov_b64 exec, 1
        buffer_store_dword v5, v4, s[8:11], s40 offen sc1
        s_mov_b64 exec, -1
        ''')
```

```python
from asmlib import *
from k1 import f32, GC1, GC2, SPIN_MAX
MISC = 144384; YT = MISC; TR = MISC + 8192; K2F_LDS = TR + 4*2304

def gen_gemm2_body(k, lds_base=0, zflags='', wflags='', no_mfma=False, no_epi=False, rot=8, stamps=None, lead=0, fused=False, endlabel=None, psleep=2):
    ACC = 16; ZB = 128; WB = 212
    def acc(ft, j): return ACC + (ft*4 + j)*4
    def zf(b, ft): return ZB + b*28 + ft*4
    def wf(b, j): return WB + b*16 + j*4
    def stamp(i):
        if stamps is not None:
            k(f's_memtime s[{70+2*i}:{71+2*i}]')
            k('s_waitcnt lgkmcnt(0)')
            stamps.append(70+2*i)
    k.srd(8, 4, NBYTES['w_sp'])
    k.srd(12, 28, WS['Z2F'][1], WS['Z2F'][0])
    k.srd(16, 28, WS['Z1F'][1], WS['Z1F'][0])
    k.srd(20, 28, WS['PF'][1], WS['PF'][0])
    k.srd(24, 6, NBYTES['b_sp'])
    k('''s_and_b32 s31, s2, 7
    s_lshr_b32 s32, s2, 3
    s_and_b32 s33, s31, 3
    s_lshl_b32 s33, s33, 3
    s_and_b32 s34, s32, 7
    s_add_u32 s33, s33, s34          ; tb
    s_lshr_b32 s34, s31, 2
    s_lshl_b32 s34, s34, 2
    s_lshr_b32 s35, s32, 3
    s_add_u32 s34, s34, s35          ; cb
    v_and_b32 v1, 63, v0             ; lane
    v_and_b32 v2, 15, v0             ; l%16
    v_lshrrev_b32 v3, 4, v1          ; l/16
    v_lshlrev_b32 v4, 4, v1          ; l*16 (Z0)
    v_add_u32 v5, 0x1000, v4         ; Z1
    ; DMA source (even instr: rows 0-7 of tile, odd: rows 8-15): row8 = l/8, pos = l%8, chunk = pos ^ ((row>>1)&7)
    v_xor_b32 v10, v3, v1
    v_and_b32 v10, 7, v10
    v_lshrrev_b32 v11, 3, v1         ; row8
    v_lshlrev_b32 v11, 12, v11
    v_lshl_add_u32 v6, v10, 4, v11
    v_xor_b32 v7, 64, v6
    v_add_u32 v7, 0x8000, v7         ; + 8 rows
    s_lshl_b32 s35, s33, 18          ; tb*64*4096
    v_add_u32 v6, s35, v6
    v_add_u32 v7, s35, v7
    v_lshrrev_b32 v11, 1, v2
    v_xor_b32 v11, v11, v3
    v_lshlrev_b32 v11, 4, v11
    v_lshl_add_u32 v11, v2, 7, v11
    ''')
    k(f's_lshl_b32 s60, s30, 14')
    if lds_base: k(f's_add_u32 s60, s60, {lds_base}')
    k('v_add_u32 v12, s60, v11')
    k('v_xor_b32 v13, 64, v12')
    if lead:
        k('s_add_u32 s66, s33, s34')
        k('s_add_u32 s66, s66, s30')
        k('s_and_b32 s66, s66, 3')
    else:
        k('s_mov_b32 s66, s30')
    for j in range(4):
        k(f's_xor_b32 s36, s30, {j}')
        k(f's_lshl_b32 s36, s36, 16')
        k(f's_lshl_b32 s37, s66, 7')
        k(f's_add_u32 s{62+j}, s36, s37')
    k('s_mul_i32 s38, s66, 114688')
    k('s_mul_i32 s39, s34, 7168')
    k('s_add_u32 s38, s38, s39')
    k('s_and_b32 s67, s34, 1')
    k('s_lshl_b32 s39, s67, 10')
    k('s_add_u32 s38, s38, s39')
    k('s_mul_i32 s68, s67, 7168')
    k('s_add_u32 s61, s34, s33')
    if lead:
        k('s_cmp_eq_u32 s30, 0')
        k(f's_cselect_b32 s61, 0, {8-lead}')
    def phase(p, sd):
        if rot == 0: return [f's_mov_b32 s{sd}, {p}']
        o = [f's_add_u32 s{sd}, s61, {p % rot}', f's_and_b32 s{sd}, s{sd}, {rot-1}']
        if p // rot: o.append(f's_add_u32 s{sd}, s{sd}, {(p//rot)*rot}')
        return o
    def dma_pre(B):
        return phase(B, 41) + ['s_lshl_b32 s41, s41, 9']
    def dma_item(B, i):
        j, h = i // 2, i % 2
        o = [f's_add_u32 m0, s60, {(B%2)*8192 + j*2048 + h*1024}']
        o.append(f's_add_u32 s42, s41, s{62+j}' if h == 0 else 's_nop 0')
        o.append(f'buffer_load_dwordx4 v{6+h}, s[8:11], s42 offen {wflags} lds')
        return o
    def zl_pre(q):
        out = phase(q//2, 40)
        out.append(f's_mul_i32 s40, s40, {8*57344}')
        out.append('s_add_u32 s40, s40, s38')
        if q % 2: out.append('s_add_u32 s40, s40, 57344')
        out.append('s_sub_u32 s69, s40, s68')
        return out
    def zl_item(q, ft):
        return [f'buffer_load_dwordx4 {vr(zf(q%3,ft),4)}, v{4 + ft//4}, s[12:15], s{69 if ft == 6 else 40} offen offset:{(ft%4)*1024} {zflags}']
    def rd(q):
        B, h = q // 2, q % 2
        return [f'ds_read_b128 {vr(wf(q%2,j),4)}, v{12+h} offset:{(B%2)*8192 + j*2048}' for j in range(4)]
    Z1R = [244, 246, 248, 250, 252, 254, 14]
    BREG = 11
    def epi_loads():
        k('s_lshl_b32 s41, s33, 2')
        k('s_add_u32 s41, s41, s30')
        k('s_mul_i32 s42, s41, 28672')
        k('s_mul_i32 s43, s34, 7')
        k('s_add_u32 s43, s43, s67')
        k('s_lshl_b32 s43, s43, 9')
        k('s_add_u32 s50, s42, s43')
        k('s_mul_i32 s44, s67, 4088')
        k('s_add_u32 s51, s50, 3072')
        k('s_sub_u32 s51, s51, s44')
        for i in range(3):
            k(f'buffer_load_dwordx4 {vr(Z1R[2*i],4)}, v4, s[16:19], s50 offen offset:{i*1024}')
        k(f'buffer_load_dwordx2 {vr(Z1R[6],2)}, v4, s[16:19], s51 offen')
        k('s_lshl_b32 s46, s41, 5')
        k('v_lshlrev_b32 v10, 1, v2')
        k(f'buffer_load_ushort v{BREG}, v10, s[24:27], s46 offen')
        k('s_mov_b32 s49, 0xffff0000')
        k(f's_mov_b32 s47, {f32(GC1)}')
        k(f'v_mov_b32 v3, {f32(GC2)}')
    def gelu_ops(z):
        return [f'v_lshlrev_b32 v0, 16, v{z}', f'v_and_b32 v1, s49, v{z}',
                'v_mul_f32 v8, v0, v0', 'v_mul_f32 v9, v1, v1', 'v_fma_f32 v8, v8, v3, s47', 'v_fma_f32 v9, v9, v3, s47',
                'v_mul_f32 v8, v8, v0', 'v_mul_f32 v9, v9, v1', 'v_exp_f32 v8, v8', 'v_exp_f32 v9, v9', None,
                'v_add_f32 v8, 1.0, v8', 'v_add_f32 v9, 1.0, v9', 'v_rcp_f32 v8, v8', 'v_rcp_f32 v9, v9', None,
                'v_mul_f32 v0, v0, v8', 'v_mul_f32 v1, v1, v9', f'v_cvt_pk_bf16_f32 v{z}, v0, v1']
    seq = []
    def issue(tag, lines, n):
        for l in lines: k(l)
        seq.append((tag, n))
    def wait_for(tag):
        idx = max(i for i, (t, n) in enumerate(seq) if t == tag)
        k(f's_waitcnt vmcnt({sum(n for t, n in seq[idx+1:])})')
    def full_dma(B):
        for l in dma_pre(B): k(l)
        for i in range(8): issue(f'D{B}', dma_item(B, i), 1)
    def full_z(q):
        for l in zl_pre(q): k(l)
        for ft in range(7): issue(f'Z{q}_{ft}', zl_item(q, ft), 1)
    full_dma(0); full_z(0); full_z(1)
    full_dma(1)
    if not no_epi:
        epi_loads(); seq.append(('E', 5))
    full_z(2)
    if not fused: stamp(0)
    wait_for('D0')
    if not fused: stamp(1)
    k('s_waitcnt lgkmcnt(0)')
    for l in rd(0): k(l)
    NQ = 16
    for q in range(NQ):
        if q % 2 == 1 and q + 1 < NQ: wait_for(f'D{(q+1)//2}')
        if q + 1 < NQ:
            for l in rd(q+1): k(l)
            k('s_waitcnt lgkmcnt(4)')
        else:
            k('s_waitcnt lgkmcnt(0)')
        doD = (q % 2 == 1 and (q+3)//2 < 8)
        doZ = q + 3 < NQ
        if doD:
            for l in dma_pre((q+3)//2): k(l)
        if doZ:
            for l in zl_pre(q+3): k(l)
        if q == 2 and not no_epi: wait_for('E')
        go = gelu_ops(Z1R[(q-2)//2] + (q-2) % 2) if (2 <= q and not no_epi) else []
        b = q % 3
        last = q == NQ-1
        order = [(ft, j) for ft in range(7) for j in range(4)] if not last else [(ft, j) for j in (3, 1, 2, 0) for ft in range(7)]
        if last:
            wait_for(f'Z{q}_6')
            k(f'v_add_u32 v10, s60, v4')
        for n, (ft, j) in enumerate(order):
            if not last and j == 0: wait_for(f'Z{q}_{ft}')
            c = '0' if q == 0 else vr(acc(ft,j),4)
            k(f'v_mfma_f32_16x16x32_bf16 {vr(acc(ft,j),4)}, {vr(zf(b,ft),4)}, {vr(wf(q%2,j),4)}, {c}')
            if go:
                o = go.pop(0)
                if o: k(o)
            if last and not no_epi and n >= 8 and n - 8 < 14:
                m = n - 8
                k(f'ds_write_b128 v10, {vr(acc(m%7, (3,1)[m//7]),4)} offset:{m*1024}')
            if doD and j == 1: issue(f'D{(q+3)//2}', dma_item((q+3)//2, ft), 1)
            if doD and n == 27: issue(f'D{(q+3)//2}', dma_item((q+3)//2, 7), 1)
            if doZ and j == 3: issue(f'Z{q+3}_{ft}', zl_item(q+3, ft), 1)
        if q == 7: stamp(2)
    stamp(3)
    if no_epi: return
    T = ZB + 28
    k(f's_xor_b32 s48, s60, 0x4000')
    k(f's_xor_b32 s47, s60, 0xc000')
    k(f'v_add_u32 v12, s48, v4')
    k(f'v_add_u32 v13, s47, v4')
    k(f'v_lshlrev_b32 v{BREG}, 16, v{BREG}')
    k('s_waitcnt lgkmcnt(0)')
    k('s_barrier')
    for i in range(14):
        k(f'ds_read_b128 {vr(T+4*i,4)}, v12 offset:{i*1024}')
    for ft in range(7):
        k(f's_waitcnt lgkmcnt({13})' if ft == 0 else f's_waitcnt lgkmcnt(13)')
        for r in range(4):
            k(f'v_add_f32 v{acc(ft,2)+r}, v{acc(ft,2)+r}, v{T+4*ft+r}')
        k(f'ds_write_b128 v12, {vr(acc(ft,2),4)} offset:{ft*1024}')
    k('s_waitcnt lgkmcnt(0)')
    k('s_barrier')
    T2 = ZB
    for ft in range(7):
        k(f'ds_read_b128 {vr(T2+4*ft,4)}, v13 offset:{ft*1024}')
    for ft in range(7):
        for r in range(4):
            k(f'v_add_f32 v{acc(ft,0)+r}, v{acc(ft,0)+r}, v{T+4*(7+ft)+r}')
            k(f'v_add_f32 v{acc(ft,0)+r}, v{acc(ft,0)+r}, v{BREG}')
    for ft in range(7):
        a = acc(ft, 0)
        k(f's_waitcnt lgkmcnt({6-ft})')
        for r in range(4):
            k(f'v_add_f32 v{a+r}, v{a+r}, v{T2+4*ft+r}')
        for h in range(2):
            z = Z1R[ft] + h
            k(f'v_lshlrev_b32 v0, 16, v{z}')
            k(f'v_and_b32 v1, s49, v{z}')
            k(f'v_mul_f32 v0, v0, v{a+2*h}')
            k(f'v_mul_f32 v1, v1, v{a+2*h+1}')
            k(f'v_cvt_pk_bf16_f32 v{z}, v0, v1')
        sf = 'sc1' if fused else ''
        if ft == 6: k(f'buffer_store_dwordx2 {vr(Z1R[ft],2)}, v4, s[20:23], s51 offen {sf}')
        elif ft % 2: k(f'buffer_store_dwordx4 {vr(Z1R[ft-1],4)}, v4, s[20:23], s50 offen offset:{(ft//2)*1024} {sf}')
    stamp(4)
    if not fused: return
    k.srd(8, 28, WS['FLG'][1], WS['FLG'][0])
    k.srd(16, 28, WS['Y2T'][1], WS['Y2T'][0])
    k.srd(12, 28, WS['ST1'][1], WS['ST1'][0])
    k.srd(24, 84, NBYTES['q'])
    k.srd(36, 86, NBYTES['out'])
    k('''v_lshrrev_b32 v2, 4, v4          ; lane
    v_lshrrev_b32 v6, 3, v2          ; l/8
    v_and_b32 v7, 7, v2              ; l%8
    v_mul_u32_u24 v9, 896, v6
    v_lshl_add_u32 v9, v7, 4, v9
    s_lshl_b32 s43, s33, 6
    s_lshl_b32 s44, s30, 4
    s_add_u32 s43, s43, s44          ; row0
    s_mul_i32 s44, s43, 896
    s_lshl_b32 s45, s34, 7
    s_add_u32 s44, s44, s45          ; soffset h=0
    s_add_u32 s45, s44, 7168         ; h=1
    s_lshl_b32 s46, s43, 3
    v_lshlrev_b32 v10, 3, v6
    s_lshl_b32 s40, s33, 7
    s_lshl_b32 s41, s34, 4
    s_add_u32 s40, s40, s41
    s_lshl_b32 s41, s30, 2
    s_add_u32 s40, s40, s41
    v_mov_b32 v0, 0
    v_mov_b32 v1, s59
    s_waitcnt vmcnt(0)
    s_mov_b64 exec, 1
    buffer_store_dword v1, v0, s[8:11], s40 offen sc1
    s_mov_b64 exec, -1
    ''')
    stamp(0)
    stamp(1)
    k('s_cmp_eq_u32 s34, 7')
    k(f's_cbranch_scc1 {endlabel}')
    k('''buffer_load_dwordx4 v[12:15], v9, s[24:27], s44 offen
    buffer_load_dwordx4 v[16:19], v9, s[24:27], s45 offen
    buffer_load_dwordx2 v[20:21], v10, s[12:15], s46 offen
    buffer_load_dwordx2 v[22:23], v10, s[12:15], s46 offen offset:64
    v_lshlrev_b32 v8, 2, v2
    s_lshl_b32 s41, s34, 8
    s_add_u32 s41, s41, 4096
    ''')
    lp, ok = k.label('ppoll'), k.label('pok')
    k('s_cmp_lg_u32 s30, 0')
    k(f's_cbranch_scc1 {ok}')
    k('v_and_b32 v5, 0x7c, v8')
    k('s_lshl_b32 s40, s33, 7')
    k(f's_mov_b32 s42, {SPIN_MAX}')
    k(f'{lp}:')
    k('buffer_load_dword v3, v5, s[8:11], s40 offen sc1')
    k('s_sub_u32 s42, s42, 1')
    k('s_waitcnt vmcnt(0)')
    k('v_cmp_ne_u32 vcc, v3, v1')
    k('s_cmp_eq_u32 s42, 0')
    k(f's_cbranch_scc1 {ok}')
    k('s_nop 2')
    k(f's_cbranch_vccz {ok}')
    k(f's_sleep {psleep}')
    k(f's_branch {lp}')
    k(f'{ok}:')
    k('s_barrier')
    lp, ok = k.label('cvpoll'), k.label('cvok')
    k(f's_mov_b32 s42, {SPIN_MAX}')
    k(f'{lp}:')
    k('buffer_load_dword v3, v8, s[8:11], s41 offen sc1')
    k('s_sub_u32 s42, s42, 1')
    k('s_waitcnt vmcnt(0)')
    k('v_cmp_ne_u32 vcc, v3, v1')
    k('s_cmp_eq_u32 s42, 0')
    k(f's_cbranch_scc1 {ok}')
    k('s_nop 2')
    k(f's_cbranch_vccz {ok}')
    k('s_sleep 2')
    k(f's_branch {lp}')
    k(f'{ok}:')
    k(f'''; y2 tile DMA (private): rows d = 32i + l/2, chunk l%2 ; src = (64cb + d)*4096 + (64tb+16w)*2 + (l%2)*16
    v_lshrrev_b32 v8, 1, v2
    v_lshlrev_b32 v8, 12, v8
    v_and_b32 v3, 1, v2
    v_lshl_add_u32 v8, v3, 4, v8
    s_lshl_b32 s40, s34, 18
    s_lshl_b32 s41, s43, 1
    s_add_u32 s40, s40, s41
    s_add_u32 s41, s40, 0x20000
    s_lshl_b32 s42, s30, 11
    s_add_u32 s42, s42, {YT}
    s_mov_b32 m0, s42
    s_nop 0
    buffer_load_dwordx4 v8, s[16:19], s40 offen sc1 lds
    s_add_u32 m0, s42, 1024
    s_nop 0
    buffer_load_dwordx4 v8, s[16:19], s41 offen sc1 lds
    v_lshlrev_b32 v24, 3, v2
    v_add_u32 v24, s42, v24
    v_and_b32 v25, 15, v2
    v_mul_u32_u24 v25, 144, v25
    v_lshrrev_b32 v3, 4, v2
    v_lshl_add_u32 v25, v3, 3, v25
    s_mul_i32 s48, s30, 2304
    s_add_u32 s48, s48, {TR}
    v_add_u32 v25, s48, v25
    v_mul_u32_u24 v26, 144, v6
    v_lshl_add_u32 v26, v7, 4, v26
    v_add_u32 v26, s48, v26
    v_lshrrev_b32 v27, 1, v7
    v_lshlrev_b32 v27, 10, v27
    v_and_b32 v28, 1, v7
    v_lshl_add_u32 v27, v28, 9, v27
    v_lshl_add_u32 v27, v6, 4, v27
    s_lshl_b32 s48, s30, 12
    v_add_u32 v27, s48, v27
    s_mov_b32 s50, {f32(-1.4426950408889634)}
    s_mov_b32 s51, {f32(-1.4426950408889634)}
    s_mov_b32 s52, 1.0
    s_mov_b32 s53, 1.0
    ''')
    X = 40; S = 56
    for h in range(2):
        for d in range(4):
            k(f'v_lshlrev_b32 v{X+8*h+2*d}, 16, v{12+4*h+d}')
            k(f'v_and_b32 v{X+8*h+2*d+1}, s49, v{12+4*h+d}')
    k('s_waitcnt vmcnt(0)')
    for i in range(4): k(f'ds_read_b64_tr_b16 v[{32+2*i}:{33+2*i}], v24 offset:{i*512}')
    for i in range(4):
        k(f's_waitcnt lgkmcnt(3)')
        k(f'ds_write_b64 v25, v[{32+2*i}:{33+2*i}] offset:{i*32}')
    k('s_waitcnt lgkmcnt(0)')
    k('ds_read_b128 v[32:35], v26')
    k(f'ds_read_b128 v[36:39], v26 offset:{8*144}')
    k('s_waitcnt lgkmcnt(0)')
    for h in range(2):
        m, r = 20+2*h, 21+2*h
        for d in range(4):
            k(f'v_lshlrev_b32 v28, 16, v{32+4*h+d}')
            k(f'v_and_b32 v29, s49, v{32+4*h+d}')
            for e in range(2):
                sx = S+8*h+2*d+e
                k(f'v_sub_f32 v{sx}, v{X+8*h+2*d+e}, v{m}')
                k(f'v_mul_f32 v{sx}, v{sx}, v{r}')
                k(f'v_mul_f32 v{sx}, v{sx}, v{28+e}')
    if stamps is not None:
        k('s_memtime s[72:73]')
        k('s_waitcnt lgkmcnt(0)')
    k('s_barrier')
    R = 72
    for h in range(2):
        for p in range(4):
            for gg in range(2):
                k(f'ds_read_b128 {vr(R + ((h*4+p)*2+gg)*4, 4)}, v27 offset:{p*16384 + gg*256 + h*128}')
    for h in range(2):
        k(f's_waitcnt lgkmcnt({8 if h == 0 else 0})')
        b = R + h*32
        P = range(4)
        for d in P:
            k(f'v_pk_add_f32 {vr(b+2*d,2)}, {vr(b+2*d,2)}, {vr(b+8+2*d,2)}')
            k(f'v_pk_add_f32 {vr(b+16+2*d,2)}, {vr(b+16+2*d,2)}, {vr(b+24+2*d,2)}')
        for d in P: k(f'v_pk_add_f32 {vr(b+2*d,2)}, {vr(b+2*d,2)}, {vr(b+16+2*d,2)}')
        for d in P: k(f'v_pk_mul_f32 {vr(b+8+2*d,2)}, {vr(b+2*d,2)}, s[50:51]')
        for e in range(8): k(f'v_exp_f32 v{b+8+e}, v{b+8+e}')
        for d in P: k(f'v_pk_mul_f32 {vr(b+2*d,2)}, {vr(b+2*d,2)}, {vr(S+8*h+2*d,2)}')
        for d in P: k(f'v_pk_add_f32 {vr(b+8+2*d,2)}, {vr(b+8+2*d,2)}, s[52:53]')
        for e in range(8): k(f'v_rcp_f32 v{b+8+e}, v{b+8+e}')
        k('s_nop 0')
        for d in P: k(f'v_pk_fma_f32 {vr(b+2*d,2)}, {vr(b+2*d,2)}, {vr(b+8+2*d,2)}, {vr(X+8*h+2*d,2)}')
        for d in P: k(f'v_cvt_pk_bf16_f32 v{b+16+d}, v{b+2*d}, v{b+2*d+1}')
        k(f'buffer_store_dwordx4 {vr(b+16,4)}, v9, s[36:39], s{44+h} offen')

def gen_gemm3_helper(k, stamps=None):
    from k1 import Seq
    def stamp(i):
        if stamps is not None:
            k(f's_memtime s[{70+2*i}:{71+2*i}]')
            k('s_waitcnt lgkmcnt(0)')
            stamps.append(70+2*i)
    k.srd(8, 28, WS['PF'][1], WS['PF'][0])
    k.srd(12, 28, WS['WOF'][1], WS['WOF'][0])
    k.srd(16, 28, WS['FLG'][1], WS['FLG'][0])
    k('''v_and_b32 v2, 63, v0
    v_lshlrev_b32 v4, 4, v2
    v_add_u32 v5, 0x1000, v4
    s_mul_i32 s47, s30, 7168
    ''')
    for i in range(4):
        k(f's_lshl_b32 s48, s34, 2')
        k(f's_add_u32 s48, s48, {i}')
        k(f's_mul_i32 s48, s48, 28672')
        k(f's_add_u32 s{50+i}, s48, s47')
        k(f's_lshl_b32 s48, s33, 2')
        k(f's_add_u32 s48, s48, {i}')
        k(f's_mul_i32 s48, s48, 28672')
        k(f's_add_u32 s{54+i}, s48, s47')
    k('''s_lshl_b32 s48, s30, 14
    v_add_u32 v6, s48, v4
    v_and_b32 v7, 31, v2
    v_lshlrev_b32 v7, 2, v7
    s_lshl_b32 s40, s33, 7
    v_mov_b32 v1, s59
    ''')
    ACC = 8; WBs = 72; PB = 184; NBUF = 4
    def acc(i, j): return ACC + (i*4+j)*4
    def wf(q, i): return WBs + q*16 + i*4
    def pf(q, j): return PB + (q % NBUF)*16 + j*4
    wl = [f'buffer_load_dwordx4 {vr(wf(q,i),4)}, v{4+q//4}, s[12:15], s{50+i} offen offset:{(q%4)*1024}' for q in range(7) for i in range(4)]
    stamp(0)
    k('s_barrier')
    stamp(1)
    for l in wl[:6]: k(l)
    k('s_barrier')
    for l in wl[6:]: k(l)
    if stamps is not None:
        k('s_waitcnt vmcnt(0)')
        k('s_memtime s[70:71]')
        k('s_waitcnt lgkmcnt(0)')
    k('s_barrier')
    stamp(2)
    Q = Seq(k)
    def items(q):
        return [(f'L{q}', [f'buffer_load_dwordx4 {vr(pf(q,j),4)}, v{4+q//4}, s[8:11], s{54+j} offen offset:{(q%4)*1024} sc1']) for j in range(4)]
    for q in range(NBUF):
        for t, l in items(q): Q.issue(t, l, 1)
    for q in range(7):
        Q.wait_for(f'L{q}')
        pend = items(q+NBUF) if q + NBUF < 7 else []
        n = 0
        for j in range(4):
            for i in range(4):
                c = '0' if q == 0 else vr(acc(i,j),4)
                k(f'v_mfma_f32_16x16x32_bf16 {vr(acc(i,j),4)}, {vr(wf(q,i),4)}, {vr(pf(q,j),4)}, {c}')
                if q == 6 and n >= 8:
                    m = n - 8
                    k(f'ds_write_b128 v6, {vr(acc(m%4, m//4),4)} offset:{m*1024}')
                n += 1
            if pend:
                t, l = pend.pop(0); Q.issue(t, l, 1)
    k('s_nop 4')
    for m in range(8, 16):
        k(f'ds_write_b128 v6, {vr(acc(m%4, m//4),4)} offset:{m*1024}')
    stamp(3)
    k('s_waitcnt lgkmcnt(0)')
    k('s_barrier')

def gen_k2_only(name='k2_kernel', kidx=0, **kw):
    k = Kern(name)
    stamp_begin(k)
    k('s_cmp_ge_u32 s2, 256')
    k(f's_cbranch_scc1 {name}_end')
    k(f's_load_dwordx2 s[4:5], s[0:1], {KA["w_sp"]}')
    k(f's_load_dwordx2 s[6:7], s[0:1], {KA["b_sp"]}')
    k(f's_load_dwordx2 s[28:29], s[0:1], {KA["ws"]}')
    k('v_lshrrev_b32 v1, 6, v0')
    k('s_nop 0')
    k('v_readfirstlane_b32 s30, v1')
    k('s_waitcnt lgkmcnt(0)')
    st = []
    gen_gemm2_body(k, stamps=st, **kw)
    stamp_end(k, kidx, 28, 30, extra=st)
    k(f'{name}_end:')
    k('s_endpgm')
    return k

if __name__ == '__main__':
    ks = []
    for rot in (0, 8):
        for nm, kw in [('full', {}), ('noepi', dict(no_epi=True)), ('nomfma', dict(no_epi=True, no_mfma=True))]:
            ks.append(gen_k2_only(f'k2{nm}_r{rot}_kernel', kidx=len(ks), rot=rot, **kw))
    build_file('k2.s', [(k.name, 256, 256, 65536) for k in ks], [k.text(256) for k in ks])
```

```python
import sys
from asmlib import *
from k1 import gen_k1, K1_LDS
from k2_gemm import gen_gemm2_body, gen_gemm3_helper, K2F_LDS
from k1 import EPOCH_OFF
from k2_conv import gen_conv_body, CONV_LDS
from k3 import gen_k3, K3_LDS, K3_VGPR

def gen_k2(name='k2_kernel', kidx=None, **kw):
    k = Kern(name)
    if kidx is not None: stamp_begin(k)
    k('s_cmp_ge_u32 s2, 256')
    k(f's_cbranch_scc1 {name}_end')
    k(f's_load_dwordx2 s[28:29], s[0:1], {KA["ws"]}')
    k('v_lshrrev_b32 v1, 6, v0')
    k('s_nop 0')
    k('v_readfirstlane_b32 s30, v1')
    k('s_cmp_ge_u32 s30, 4')
    k(f's_cbranch_scc1 {name}_conv')
    k(f's_load_dwordx4 s[4:7], s[0:1], {KA["w_sp"]}')
    k('s_waitcnt lgkmcnt(0)')
    st = [] if kidx is not None else None
    gen_gemm2_body(k, stamps=st, **kw)
    if kidx is not None: stamp_end(k, kidx, 28, 30, extra=st)
    k('s_endpgm')
    k(f'{name}_conv:')
    k('s_cmp_ge_u32 s2, 224')
    k(f's_cbranch_scc1 {name}_wof')
    k(f's_load_dwordx4 s[4:7], s[0:1], {KA["ssm_k"]}')
    k('s_setprio 3')
    k('s_mov_b32 s89, s30')
    k('s_sub_u32 s30, s30, 4')
    k('s_waitcnt lgkmcnt(0)')
    gen_conv_body(k, 65536)
    if kidx is not None: stamp_end(k, kidx, 28, 89)
    k('s_endpgm')
    k(f'{name}_wof:')
    k('s_cmp_ge_u32 s2, 252')
    k(f's_cbranch_scc1 {name}_end')
    k(f's_load_dwordx2 s[4:5], s[0:1], {KA["w_out"]}')
    k('''s_setprio 3
    s_sub_u32 s30, s30, 4
    s_sub_u32 s33, s2, 224
    v_and_b32 v1, 63, v0
    s_mul_i32 s35, s30, 28672
    s_add_u32 s35, s35, 65536
    v_lshlrev_b32 v4, 4, v1
    s_mul_i32 s34, s33, 28672
    s_waitcnt lgkmcnt(0)
    ''')
    k.srd(8, 4, NBYTES['w_out'])
    k.srd(12, 28, WS['WOF'][1], WS['WOF'][0])
    for i in range(14):
        k(f'v_add_u32 v5, {64*i}, v1')
        k('v_mul_u32_u24 v6, 2341, v5')
        k('v_lshrrev_b32 v6, 16, v6')
        k('v_mul_u32_u24 v7, 28, v6')
        k('v_add_u32 v5, v5, v7')
        k('v_lshlrev_b32 v5, 4, v5')
        k(f's_add_u32 m0, s35, {i*1024}')
        k('s_mul_i32 s36, s30, 448')
        k('s_add_u32 s36, s36, s34')
        k('buffer_load_dwordx4 v5, s[8:11], s36 offen nt lds')
    k('''v_lshrrev_b32 v5, 2, v1
    v_mul_u32_u24 v5, 448, v5
    v_and_b32 v6, 3, v1
    v_lshl_add_u32 v5, v6, 3, v5
    v_add_u32 v5, s35, v5
    s_mul_i32 s36, s30, 401408       ; 14*28672
    s_lshl_b32 s37, s33, 10
    s_add_u32 s36, s36, s37
    s_waitcnt vmcnt(0)
    ''')
    for i in range(14):
        r = 8 + 4*(i % 4)
        k(f'ds_read_b64_tr_b16 v[{r}:{r+1}], v5 offset:{i*32}')
        k(f'ds_read_b64_tr_b16 v[{r+2}:{r+3}], v5 offset:{i*32 + 16*448}')
        k(f's_add_u32 s37, s36, {i*28672}')
        k('s_waitcnt lgkmcnt(0)')
        k(f'buffer_store_dwordx4 v[{r}:{r+3}], v4, s[12:15], s37 offen')
    k(f'{name}_end:')
    k('s_endpgm')
    return k

def gen_k2f(name='k2_kernel', kidx=None, **kw):
    k = Kern(name)
    if kidx is not None: stamp_begin(k)
    k('s_cmp_ge_u32 s2, 256')
    k(f's_cbranch_scc1 {name}_end')
    k(f's_load_dwordx2 s[28:29], s[0:1], {KA["ws"]}')
    k('v_lshrrev_b32 v1, 6, v0')
    k('s_nop 0')
    k('v_readfirstlane_b32 s30, v1')
    k('s_cmp_ge_u32 s30, 4')
    k(f's_cbranch_scc1 {name}_hlp')
    k(f's_load_dwordx4 s[4:7], s[0:1], {KA["w_sp"]}')
    k(f's_load_dwordx2 s[84:85], s[0:1], {KA["q"]}')
    k(f's_load_dwordx2 s[86:87], s[0:1], {KA["out"]}')
    k('s_waitcnt lgkmcnt(0)')
    k(f's_add_u32 s58, s28, {WS["PART"][0] + EPOCH_OFF}')
    k('s_addc_u32 s59, s29, 0')
    k('s_load_dword s59, s[58:59], 0')
    st = [] if kidx is not None else None
    gen_gemm2_body(k, stamps=st, fused=True, endlabel=f'{name}_gend', **kw)
    k(f'{name}_gend:')
    if kidx is not None: stamp_end(k, kidx, 28, 30, extra=st)
    k('s_endpgm')
    k(f'{name}_hlp:')
    k(f's_load_dwordx4 s[4:7], s[0:1], {KA["ssm_k"]}')
    k('s_setprio 3')
    k('s_mov_b32 s89, s30')
    k('s_sub_u32 s30, s30, 4')
    k('s_waitcnt lgkmcnt(0)')
    k(f's_add_u32 s58, s28, {WS["PART"][0] + EPOCH_OFF}')
    k('s_addc_u32 s59, s29, 0')
    k('s_load_dword s59, s[58:59], 0')
    k('s_cmp_ge_u32 s2, 224')
    k(f's_cbranch_scc1 {name}_nocv')
    k('s_cmp_ge_u32 s30, 2')
    k(f's_cbranch_scc1 {name}_nocv')
    gen_conv_body(k, 65536, fused=True)
    k(f'{name}_nocv:')
    k('''s_setprio 0
    s_and_b32 s31, s2, 7
    s_lshr_b32 s32, s2, 3
    s_and_b32 s33, s31, 3
    s_lshl_b32 s33, s33, 3
    s_and_b32 s34, s32, 7
    s_add_u32 s33, s33, s34          ; tb
    s_lshr_b32 s34, s31, 2
    s_lshl_b32 s34, s34, 2
    s_lshr_b32 s35, s32, 3
    s_add_u32 s34, s34, s35          ; cb
    s_waitcnt lgkmcnt(0)
    s_cmp_eq_u32 s34, 7
    ''')
    k(f's_cbranch_scc1 {name}_end')
    st = [] if kidx is not None else None
    gen_gemm3_helper(k, stamps=st)
    if kidx is not None: stamp_end(k, kidx, 28, 89, extra=st)
    k(f'{name}_end:')
    k('s_endpgm')
    return k

def build_f(path, ts, kw2={}, **kw):
    k1 = gen_k1('k1_kernel', 0 if ts else None, wof=True, **kw)
    k2 = gen_k2f('k2_kernel', 1 if ts else None, **kw2)
    build_file(path, [('k1_kernel', 256, 512, K1_LDS), ('k2_kernel', 256, 512, K2F_LDS)], [k1.text(256), k2.text(256)])

def build(path, ts, kw2={}, **kw):
    k1 = gen_k1('k1_kernel', 0 if ts else None, **kw)
    k2 = gen_k2('k2_kernel', 1 if ts else None, **kw2)
    k3 = gen_k3('k3_kernel', 2 if ts else None)
    build_file(path, [('k1_kernel', 256, 512, K1_LDS), ('k2_kernel', 256, 384, 65536 + CONV_LDS), ('k3_kernel', 224, 512, K3_LDS)],
               [k1.text(256), k2.text(256), k3.text(**K3_VGPR)])
DEF = dict(kw2=dict(rot=0), prefetch=0)
if __name__ == '__main__':
    build('full_ts.s', True, **DEF)
    build_f('fus_ts.s', True, **DEF)
    build_f('fus.s', False, **DEF)
    build('recurrent_scan__ssm_conv_h3__mixer_gmlp__prompt.s', False, **DEF)
```

```python
from asmlib import *
import struct
def f32(x): return '0x%08x' % struct.unpack('<I', struct.pack('<f', x))[0]
EPOCH_OFF = 16*4*28*512
SLOT = 24576; WZ1 = 98304; SCR = 155648
XS2 = SCR; CSF = SCR + 1024; CSP = SCR + 3072
K1_LDS = SCR + 1024 + 2048 + 2048
SPIN_MAX = 1 << 14
GC1 = -2*0.7978845608028654*1.4426950408889634
GC2 = GC1*0.044715

def round_bf16_single(k, dst, src):
    k(f'v_cvt_pk_bf16_f32 v{dst}, v{src}, v{src}')
    k(f'v_lshlrev_b32 v{dst}, 16, v{dst}')

def ln_stats(k, S1, S2, n, MB, RS, T):
    k(f'v_mul_f32 v{MB}, {f32(1.0/n)}, v{S1}')
    k(f'v_mul_f32 v{T}, {f32(1.0/n)}, v{S2}')
    k(f'v_fma_f32 v{T}, -v{MB}, v{MB}, v{T}')
    k(f'v_max_f32 v{T}, 0, v{T}')
    round_bf16_single(k, T, T)
    k(f'v_add_f32 v{T}, {f32(1e-5)}, v{T}')
    round_bf16_single(k, T, T)
    k(f'v_sqrt_f32 v{T}, v{T}')
    round_bf16_single(k, MB, MB)
    round_bf16_single(k, T, T)
    k(f'v_rcp_f32 v{RS}, v{T}')
    k('s_nop 0')

class Seq:
    def __init__(self, k): self.k = k; self.seq = []
    def issue(self, tag, lines, n):
        for l in lines: self.k(l)
        self.seq.append((tag, n))
    def wait_for(self, tag):
        idx = max(i for i, (t, n) in enumerate(self.seq) if t == tag)
        self.k(f's_waitcnt vmcnt({sum(n for t, n in self.seq[idx+1:])})')
    def copy(self):
        s = Seq(self.k); s.seq = list(self.seq); return s

def gen_k1(name='k1_kernel', kidx=None, prefetch=4, dbgstage=False, rotate=True, pf2=None, pfflags='', pfz=None, w1s=(5,5,5,5,6,6,6,6), cpf=True, wof=False):
    k = Kern(name)
    def mkstamp(lst):
        def stamp(i, stage=False):
            if kidx is not None and stage == dbgstage:
                k(f's_memtime s[{80+2*i}:{81+2*i}]')
                k('s_waitcnt lgkmcnt(0)')
                lst.append(80+2*i)
        return stamp
    if kidx is not None: stamp_begin(k)
    k('s_cmp_ge_u32 s2, 256')
    k(f's_cbranch_scc1 {name}_end')
    k('s_load_dwordx8 s[64:71], s[0:1], 0')
    if cpf:
        lab = k.label('cpf')
        k(f'''s_getpc_b64 s[40:41]
        {name}_pc:
        s_sub_u32 s40, s40, {name}_pc-{name}
        s_subb_u32 s41, s41, 0
        s_lshr_b32 s3, s2, 3
        s_lshl_b32 s3, s3, 10
        v_lshlrev_b32 v1, 7, v0
        v_add_u32 v1, s3, v1
        v_cmp_gt_u32 vcc, 8, v0
        s_and_saveexec_b64 s[42:43], vcc
        s_cbranch_execz {lab}
        global_load_dword v255, v1, s[40:41]
        {lab}:
        s_mov_b64 exec, -1
        ''')
    k(f's_load_dwordx4 s[72:75], s[0:1], {KA["w_in"]}')
    k(f's_load_dwordx4 s[76:79], s[0:1], {KA["dbg"]}')
    if wof: k(f's_load_dwordx2 s[48:49], s[0:1], {KA["w_out"]}')
    k('''v_lshrrev_b32 v1, 6, v0
    v_and_b32 v2, 31, v0             ; l%32
    v_readfirstlane_b32 s30, v1      ; wave
    v_and_b32 v1, 63, v0             ; lane
    v_lshrrev_b32 v3, 5, v1          ; hi
    s_and_b32 s31, s30, 3            ; sg
    s_lshr_b32 s32, s30, 2           ; role
    s_and_b32 s35, s2, 7             ; xcd
    s_lshr_b32 s3, s2, 3             ; j
    s_cmp_ge_u32 s3, 28
    ''')
    k(f's_cbranch_scc1 {name}_aux')
    k('''s_mul_i32 s33, s3, 37
    s_lshr_b32 s33, s33, 8           ; j/7
    s_mul_i32 s34, s33, 7
    s_sub_u32 s34, s3, s34           ; j%7
    s_lshl_b32 s4, s33, 1
    s_add_u32 s4, s4, s34
    s_add_u32 s4, s4, s35            ; rot = j%7 + 2*(j/7) + xcd  (< 21)
    s_and_b32 s7, s35, 3
    s_lshl_b32 s7, s7, 2
    s_add_u32 s33, s33, s7
    s_lshr_b32 s7, s35, 2
    s_mul_i32 s7, s7, 7
    s_add_u32 s34, s34, s7           ; cb = 7*(xcd>>2) + j%7
    v_lshrrev_b32 v28, 3, v1         ; l/8
    v_lshrrev_b32 v29, 4, v1         ; l>>4
    v_xor_b32 v30, v29, v1
    v_and_b32 v30, 7, v30            ; x chunk (h=0)
    v_mul_u32_u24 v7, 896, v28
    v_lshl_add_u32 v4, v30, 4, v7
    v_xor_b32 v30, 4, v30
    v_lshl_add_u32 v5, v30, 4, v7
    v_add_u32 v5, 7168, v5
    v_and_b32 v29, 1, v29
    v_lshlrev_b32 v29, 2, v29
    v_xor_b32 v30, v29, v1
    v_and_b32 v30, 7, v30            ; w chunk
    v_mul_u32_u24 v6, 3584, v28
    v_lshl_add_u32 v6, v30, 4, v6
    s_mul_i32 s44, s30, 28672        ; 8*w*3584
    s_add_u32 s44, s44, 1792
    v_add_u32 v126, s44, v6
    s_lshl_b32 s7, s33, 7
    s_lshl_b32 s5, s30, 4
    s_add_u32 s7, s7, s5
    s_mul_i32 s6, s7, 896
    s_lshl_b32 s44, s34, 7
    s_lshl_b32 s61, s30, 11          ; w*2048
    s_lshl_b32 s45, s30, 10          ; w*1024
    ''')
    for _ in range(2):
        k('s_cmp_ge_u32 s4, 7')
        k('s_cselect_b32 s5, 7, 0')
        k('s_sub_u32 s4, s4, s5')
    if not rotate: k('s_mov_b32 s4, 0')
    XO = [16, 17, 18, 19, 20, 21, 22]; WO = [23, 24, 25, 26, 27, 46, 47]
    for pos in range(7):
        k(f's_lshl_b32 s5, s4, 7')
        k(f's_add_u32 s{XO[pos]}, s5, s6')
        k(f's_mul_i32 s5, s4, {64*3584}')
        k(f's_add_u32 s{WO[pos]}, s5, s44')
        if pos < 6:
            k('s_add_u32 s4, s4, 1')
            k('s_cmp_eq_u32 s4, 7')
            k('s_cselect_b32 s4, 0, s4')
    k('''s_waitcnt lgkmcnt(0)
    s_mov_b32 s28, s78
    s_mov_b32 s29, s79
    ''')
    k.srd(8, 64, NBYTES['q'])
    k.srd(12, 72, NBYTES['w_in'])
    def dma_items(pos):
        slot = pos % 4
        return [(f'D{pos}', [f's_add_u32 m0, s61, {slot*SLOT}', 's_nop 0', f'buffer_load_dwordx4 v4, s[8:11], s{XO[pos]} offen lds']),
                (f'D{pos}', [f's_add_u32 m0, s45, {slot*SLOT + 16384}', 's_nop 0', f'buffer_load_dwordx4 v126, s[12:15], s{WO[pos]} offen lds']),
                (f'D{pos}', [f's_add_u32 m0, s61, {slot*SLOT + 1024}', 's_nop 0', f'buffer_load_dwordx4 v5, s[8:11], s{XO[pos]} offen lds'])]
    Q = Seq(k)
    for pos in range(2):
        for tag, l in dma_items(pos): Q.issue(tag, l, 1)
        if pos == 0: k('s_barrier')
    def mk_queue(extra):
        q = []
        for pos in range(2, 7):
            for tag, l in dma_items(pos): q.append((max(0, pos-3), tag, l))
        return q + extra
    def pump(Qx, q, st, n=1):
        for _ in range(n):
            if q and q[0][0] <= st:
                _, tag, l = q.pop(0)
                Qx.issue(tag, l, 1)
    k('''v_lshrrev_b32 v28, 1, v2
    v_and_b32 v28, 7, v28            ; f(row)
    v_xor_b32 v28, v28, v3           ; ^hi
    v_lshlrev_b32 v28, 4, v28
    v_lshl_add_u32 v28, v2, 7, v28
    s_lshl_b32 s5, s31, 12           ; sg*32*128
    v_add_u32 v8, s5, v28
    v_xor_b32 v9, 32, v8
    v_xor_b32 v10, 64, v8
    v_xor_b32 v11, 0x60, v8
    v_add_u32 v12, 0xc000, v8
    v_add_u32 v13, 0xc000, v9
    v_add_u32 v14, 0xc000, v10
    v_add_u32 v15, 0xc000, v11
    v_bfe_u32 v29, v1, 2, 2          ; r
    v_lshl_add_u32 v30, v3, 3, v29   ; 8kg + r
    v_lshlrev_b32 v30, 7, v30
    v_and_b32 v25, 3, v1
    v_lshlrev_b32 v25, 3, v25        ; 8c
    v_bfe_u32 v24, v1, 4, 1          ; fhalf
    v_lshl_add_u32 v26, v24, 5, v25
    v_lshrrev_b32 v27, 1, v29        ; r>>1
    v_lshl_add_u32 v26, v27, 6, v26
    v_add_u32 v16, v30, v26          ; p=0
    v_xor_b32 v17, 64, v16           ; p=1
    s_mov_b32 s60, 0xffff0000
    s_cmp_eq_u32 s32, 1
    ''')
    k(f's_cbranch_scc1 {name}_z1')
    ACC = 32; CSR = 64
    def colsum_fetch(part):
        k(f'''v_lshlrev_b32 v96, 4, v1
        v_add_u32 v96, {CSP + part*1024}, v96
        ds_read_b128 v[64:67], v96
        s_lshl_b32 s4, s30, 8
        s_add_u32 s4, s4, {CSF}
        v_lshlrev_b32 v96, 2, v1
        v_add_u32 v96, s4, v96
        v_lshlrev_b32 v97, 4, v3
        v_add_u32 v97, s4, v97
        s_waitcnt lgkmcnt(0)
        v_add_f32 v64, v64, v65
        v_add_f32 v66, v66, v67
        v_add_f32 v64, v64, v66
        ds_write_b32 v96, v64
        s_waitcnt lgkmcnt(0)
        ''')
        for p in range(2):
            for j in range(4):
                k(f'ds_read_b128 {vr(CSR+16*p+4*j,4)}, v97 offset:{p*128 + j*32}')
    st2 = []; stamp = mkstamp(st2)
    Q2 = Q.copy()
    q2 = mk_queue([])
    k.srd(56, 76, 256)
    k('''v_add_u32 v18, 0x10000, v16      ; slots 2,3 : 49152 + 16384
    v_add_u32 v19, 0x10000, v17
    v_add_u32 v16, 0x4000, v16
    v_add_u32 v17, 0x4000, v17
    v_mov_b32 v221, 0
    ''')
    q2 += [(3, 'EP', ['buffer_load_dword v223, v221, s[56:59], 0 offen sc1'])]
    if pfz is not None:
        k.srd(52, 74, NBYTES['w_sp'])
        k('''s_and_b32 s4, s35, 3
        s_lshl_b32 s4, s4, 21
        s_lshr_b32 s5, s35, 2
        s_lshl_b32 s5, s5, 20
        s_add_u32 s4, s4, s5
        s_lshl_b32 s5, s3, 15
        s_add_u32 s4, s4, s5
        s_lshl_b32 s5, s31, 13
        s_add_u32 s40, s4, s5
        v_lshlrev_b32 v220, 7, v1
        ''')
    if pfz is not None:
        n = len(pfz)
        for i, stg in enumerate(pfz):
            lanes = 64 // n
            m = ((1 << lanes) - 1) << (i*lanes)
            q2.append((stg, 'PF', [f's_mov_b32 exec_lo, {hex(m & 0xffffffff)}', f's_mov_b32 exec_hi, {hex(m >> 32)}',
                                   f'buffer_load_dword v222, v220, s[52:55], s40 offen {pfflags}', 's_mov_b64 exec, -1']))
    FRB = [64, 128]
    def xf(st, ks): return FRB[st % 2] + ks*12
    def wf(st, ks, p): return FRB[st % 2] + ks*12 + 4 + p*4
    stamp(0)
    def mm(st, ks, p):
        first = (st == 0 and ks == 0)
        k(f'v_mfma_f32_32x32x16_bf16 {vr(ACC+16*p,16)}, {vr(wf(st,ks,p),4)}, {vr(xf(st,ks),4)}, {"0" if first else vr(ACC+16*p,16)}')
    for st in range(7):
        slot = st % 4
        hs, so = slot // 2, (slot % 2) * SLOT
        Q2.wait_for(f'D{st}')
        k('s_barrier')
        if st in (0, 1, 2, 4, 6): stamp({0:0, 1:1, 2:2, 4:3, 6:4}[st], True)
        for ks in range(4):
            if st: mm(st-1, ks, 0)
            k(f'ds_read_b128 {vr(xf(st,ks),4)}, v{8+4*hs+ks} offset:{so}')
            for p in range(2):
                for e2 in range(2):
                    k(f'ds_read_b64_tr_b16 {vr(wf(st,ks,p)+2*e2,2)}, v{16+2*hs+p} offset:{so + ks*2048 + e2*512}')
            if st: mm(st-1, ks, 1)
            pump(Q2, q2, st, 2 if st == 0 else 1)
        k('s_waitcnt lgkmcnt(0)')
    for ks in range(4):
        for p in range(2): mm(6, ks, p)
    pump(Q2, q2, 7, 100)
    stamp(1)
    k(f'''s_lshl_b32 s4, s31, 8
    s_add_u32 s4, s4, {XS2}
    v_lshlrev_b32 v102, 3, v2
    v_add_u32 v102, s4, v102
    v_mov_b32 v98, 0
    v_mov_b32 v99, 0
    v_mov_b32 v100, 0
    v_mov_b32 v101, 0
    s_barrier
    ds_read_b64 v[24:25], v102
    ''')
    colsum_fetch(0)
    k(f'''v_mul_f32 v108, v25, v25
    v_mul_f32 v106, {f32(GC1)}, v25
    v_mul_f32 v108, v108, v106
    v_mul_f32 v108, {f32(0.044715)}, v108
    v_sub_f32 v104, 0, v24
    v_sub_f32 v105, 0, v24
    v_mov_b32 v107, v106
    v_mov_b32 v109, v108
    s_mov_b32 s62, 1.0
    s_mov_b32 s63, 1.0
    ''')
    for g in range(4):
        k(f's_waitcnt lgkmcnt({6-2*g})')
        P = [(vr(ACC+2*i,2), vr(CSR+2*i,2), CSR+2*i) for i in range(4*g, 4*g+4)]
        for A, C, c in P: k(f'v_pk_fma_f32 {A}, v[104:105], {C}, {A}')
        for A, C, c in P: k(f'v_pk_mul_f32 {C}, {A}, {A}')
        for A, C, c in P: k(f'v_pk_fma_f32 {C}, {C}, v[108:109], v[106:107]')
        for A, C, c in P: k(f'v_pk_mul_f32 {C}, {C}, {A}')
        for A, C, c in P:
            k(f'v_exp_f32 v{c}, v{c}'); k(f'v_exp_f32 v{c+1}, v{c+1}')
        for A, C, c in P: k(f'v_pk_add_f32 {C}, {C}, s[62:63]')
        for A, C, c in P:
            k(f'v_rcp_f32 v{c}, v{c}'); k(f'v_rcp_f32 v{c+1}, v{c+1}')
        for A, C, c in P: k(f'v_pk_mul_f32 {A}, {A}, {C}')
        for A, C, c in P:
            k(f'v_pk_add_f32 v[98:99], v[98:99], {A}')
            k(f'v_pk_fma_f32 v[100:101], {A}, {A}, v[100:101]')
    k.srd(24, 28, WS['PART'][1], WS['PART'][0])
    k('''v_add_f32 v98, v98, v99
    v_add_f32 v100, v100, v101
    v_mul_f32 v98, v98, v25
    v_mul_f32 v100, v100, v25
    v_mul_f32 v100, v100, v25        ; S2 partial
    v_mov_b32 v99, v98
    v_mov_b32 v101, v100
    v_mov_b32 v103, v25
    ''')
    Q2.wait_for('EP')
    k('''    v_permlane32_swap_b32 v98, v99
    v_permlane32_swap_b32 v100, v101
    s_nop 0
    v_add_f32 v98, v98, v99
    v_add_f32 v100, v100, v101
    ''')
    lp, ok = k.label('eppoll'), k.label('epok')
    k(f's_mov_b32 s5, {SPIN_MAX}')
    k(f'{lp}:')
    k('v_readfirstlane_b32 s61, v223')
    k('s_cmp_lg_u32 s61, 0')
    k(f's_cbranch_scc1 {ok}')
    k('s_sub_u32 s5, s5, 1')
    k('s_cmp_eq_u32 s5, 0')
    k(f's_cbranch_scc1 {ok}')
    k('s_sleep 2')
    k('buffer_load_dword v223, v221, s[56:59], 0 offen sc1')
    k('s_waitcnt vmcnt(0)')
    k(f's_branch {lp}')
    k(f'{ok}:')
    k('''v_mov_b32 v99, s61
    v_mov_b32 v101, s61
    s_lshl_b32 s4, s33, 2
    s_add_u32 s4, s4, s31
    s_mul_i32 s36, s4, 7168          ; (rb*4+sg)*14*512
    s_add_u32 s37, s36, 4096
    s_lshl_b32 s4, s34, 9
    s_add_u32 s4, s4, s36
    v_lshlrev_b32 v97, 4, v1
    s_mov_b32 exec_hi, 0
    buffer_store_dwordx4 v[98:101], v97, s[24:27], s4 offen sc1
    s_mov_b64 exec, -1
    s_barrier
    ''')
    stamp(2)
    k.srd(20, 28, WS['Z2F'][1], WS['Z2F'][0])
    k('''v_mul_u32_u24 v28, 72, v2
    v_lshl_add_u32 v28, v3, 3, v28
    s_mul_i32 s4, s31, 4608
    v_add_u32 v28, s4, v28
    v_lshrrev_b32 v70, 4, v1
    v_bfe_u32 v65, v1, 2, 2
    v_lshl_add_u32 v70, v70, 3, v65
    v_mul_u32_u24 v70, 72, v70
    v_and_b32 v65, 3, v1
    v_lshl_add_u32 v70, v65, 3, v70
    v_add_u32 v70, s4, v70
    s_lshl_b32 s4, s33, 2
    s_add_u32 s4, s4, s31
    s_mul_i32 s4, s4, 57344          ; ks*56*1024
    s_lshl_b32 s5, s34, 12
    s_add_u32 s38, s4, s5
    ''')
    stamp(3)
    G = 128
    lp, ok = k.label('stpoll'), k.label('stok')
    k(f's_mov_b32 s5, {SPIN_MAX}')
    k(f'{lp}:')
    for i in range(7):
        k(f'buffer_load_dwordx4 {vr(G+4*i,4)}, v97, s[24:27], s{36+i//4} offen offset:{(i%4)*1024} sc1')
    k('s_sub_u32 s5, s5, 1')
    k('s_waitcnt vmcnt(0)')
    k(f'v_max3_u32 v64, v{G+1}, v{G+3}, v99')
    k(f'v_min3_u32 v65, v{G+1}, v{G+3}, v99')
    for i in range(1, 7):
        k(f'v_max3_u32 v64, v{G+4*i+1}, v{G+4*i+3}, v64')
        k(f'v_min3_u32 v65, v{G+4*i+1}, v{G+4*i+3}, v65')
    k('v_cmp_ne_u32 vcc, v64, v65')
    k('s_cmp_eq_u32 s5, 0')
    k(f's_cbranch_scc1 {ok}')
    k('s_nop 2')
    k(f's_cbranch_vccz {ok}')
    k('s_sleep 2')
    k(f's_branch {lp}')
    k(f'{ok}:')
    stamp(4)
    for c in (0, 2):
        k(f'v_add_f32 v{G+c}, v{G+c}, v{G+4+c}')
        k(f'v_add_f32 v{G+8+c}, v{G+8+c}, v{G+12+c}')
        k(f'v_add_f32 v{G+16+c}, v{G+16+c}, v{G+20+c}')
        k(f'v_add_f32 v{G+c}, v{G+c}, v{G+24+c}')
        k(f'v_add_f32 v{G+8+c}, v{G+8+c}, v{G+16+c}')
        k(f'v_add_f32 v{G+c}, v{G+c}, v{G+8+c}')
        k(f'v_mov_b32 v{G+c+1}, v{G+c}')
    k(f'''s_nop 1
    v_permlane32_swap_b32 v{G}, v{G+1}
    v_permlane32_swap_b32 v{G+2}, v{G+3}
    s_nop 0
    v_add_f32 v64, v{G}, v{G+1}
    v_add_f32 v65, v{G+2}, v{G+3}
    ''')
    ln_stats(k, 64, 65, 896, 24, 25, 66)
    k('''v_mul_f32 v24, v24, v25          ; m*r
    v_mul_f32 v25, v25, v103         ; r*rs1
    ''')
    for p in range(2):
        for j in range(4):
            for h in range(4):
                a = ACC+16*p+4*j+h
                k(f'v_fma_f32 v{a}, v{a}, v25, -v24')
            for h in range(2):
                a = ACC+16*p+4*j+2*h
                k(f'v_cvt_pk_bf16_f32 v{66+2*((4*p+j)%2)+h}, v{a}, v{a+1}')
            k(f'ds_write_b64 v28, {vr(66+2*((4*p+j)%2),2)} offset:{p*2304 + j*16}')
        k('s_waitcnt lgkmcnt(0)')
        for ftl in range(2):
            for e2 in range(2):
                k(f'ds_read_b64_tr_b16 {vr(128+8*p+4*ftl+2*e2,2)}, v70 offset:{p*2304 + e2*288 + ftl*32}')
    for t in range(4):
        k(f's_waitcnt lgkmcnt({max(0, 2*(3-t)) if t >= 2 else 4})')
        k(f'buffer_store_dwordx4 {vr(128+4*t,4)}, v97, s[20:23], s38 offen offset:{t*1024}')
    if kidx is not None: stamp_end(k, kidx, 28, 30, extra=st2)
    k('s_endpgm')
    k(f'{name}_z1:')
    st1 = []; stamp = mkstamp(st1)
    Q1 = Q.copy()
    w1q = []
    for pos in range(7):
        for h in range(2):
            w1q.append((w1s[len(w1q)] if len(w1q) < len(w1s) else 8, 'W1', [f's_add_u32 m0, s62, {WZ1 + pos*8192 + h*1024}', 's_nop 0', f'buffer_load_dwordx4 v{124+h}, s[12:15], s{WO[pos]} offen lds']))
    q1 = mk_queue(w1q)
    XF = 128
    k(f'''v_add_u32 v16, {WZ1}, v16
    v_add_u32 v17, {WZ1}, v17
    s_mul_i32 s4, s31, 57344         ; 16*sg*3584
    v_add_u32 v124, s4, v6
    v_add_u32 v125, 28672, v124
    s_lshl_b32 s62, s31, 11          ; sg*2048
    v_lshrrev_b32 v26, 4, v1         ; G
    v_lshl_add_u32 v25, v26, 5, v25
    v_lshlrev_b32 v27, 6, v27
    v_xor_b32 v25, v25, v27
    v_lshl_add_u32 v25, v29, 7, v25
    v_add_u32 v120, s62, v25
    v_add_u32 v121, 0x10000, v120    ; slots 2,3 (+16384)
    v_add_u32 v122, 0x18000, v120    ; WZ1
    v_add_u32 v120, 0x4000, v120     ; slots 0,1 (+16384)
    ; selector4: ones if (l%16) == l/16
    v_and_b32 v29, 15, v1
    v_cmp_eq_u32 vcc, v29, v26
    v_mov_b32 v29, 0x3f803f80
    v_bfe_u32 v25, v1, 2, 1
    v_cndmask_b32 v20, 0, v29, vcc
    v_cndmask_b32 v21, 0, v29, vcc
    v_cndmask_b32 v22, 0, v29, vcc
    v_cndmask_b32 v23, 0, v29, vcc
    v_cmp_eq_u32 vcc, v25, v24
    s_lshl_b32 s4, s31, 2
    s_add_u32 s4, s4, {CSP}
    v_cndmask_b32 v116, 0, v29, vcc
    v_cndmask_b32 v117, 0, v29, vcc
    v_cndmask_b32 v118, 0, v29, vcc
    v_cndmask_b32 v119, 0, v29, vcc
    v_lshlrev_b32 v123, 4, v1
    v_add_u32 v123, s4, v123
    ''')
    stamp(0)
    GR = 32; RSUM = 48; CF = [64, 72]
    def xstats(st, pst):
        for ks in range(4):
            x = vr(XF+16*st+4*ks, 4)
            first = (st == 0 and ks == 0)
            k(f'v_mfma_f32_32x32x16_bf16 {vr(GR,16)}, {x}, {x}, {"0" if first else vr(GR,16)}')
            pump(Q1, q1, pst)
            k(f'v_mfma_f32_16x16x32_bf16 {vr(RSUM,4)}, v[116:119], {x}, {"0" if first else vr(RSUM,4)}')
            if ks < 2:
                k(f'v_mfma_f32_16x16x32_bf16 v[24:27], v[20:23], {vr(CF[st%2]+4*ks,4)}, {"0" if first else "v[24:27]"}')
    for st in range(7):
        slot = st % 4
        hs, so = slot // 2, (slot % 2) * SLOT
        if st in (1, 2, 3, 5, 6): stamp({1:0, 2:1, 3:2, 5:3, 6:4}[st], True)
        Q1.wait_for(f'D{st}')
        k('s_barrier')
        for ks in range(4):
            k(f'ds_read_b128 {vr(XF+16*st+4*ks,4)}, v{8+4*hs+ks} offset:{so}')
        for e4 in range(4):
            k(f'ds_read_b64_tr_b16 {vr(CF[st%2]+2*e4,2)}, v{120+hs} offset:{so + e4*512}')
        if st == 0: pump(Q1, q1, st, 6)
        else: xstats(st-1, st)
        k('s_waitcnt lgkmcnt(0)')
    xstats(6, 7)
    pump(Q1, q1, 7, 100)
    stamp(1)
    k('s_mov_b64 exec, 0xffff')
    for i in range(4): k(f'ds_write_b32 v123, v{24+i} offset:{i*256}')
    k('s_mov_b64 exec, -1')
    k('s_nop 7')
    masks = [(0xaaaaaaaa, 1), (0xcccccccc, 2), (0xff00ff00, 4), (0xffff0000, 8)]
    for m, d in masks:
        k(f's_mov_b32 vcc_lo, {hex(m)}')
        k(f's_mov_b32 vcc_hi, {hex(m)}')
        for i in range(0, 16, 2*d):
            k(f'v_cndmask_b32 v{GR+i}, v{GR+i}, v{GR+i+d}, vcc')
    k(f'''s_mov_b32 vcc_lo, 0x0f0f0f0f
    s_mov_b32 vcc_hi, 0xf0f0f0f0
    v_cndmask_b32 v30, 0, v{GR}, vcc
    v_cndmask_b32 v31, 0, v{GR}, vcc
    s_lshl_b32 s4, s31, 8
    s_add_u32 s5, s4, {XS2}
    v_permlane32_swap_b32 v30, v31
    v_lshlrev_b32 v96, 3, v2
    v_add_u32 v97, s5, v96
    v_add_f32 v30, v30, v31
    ''')
    ln_stats(k, RSUM, 30, 448, 98, 99, 29)
    k('''ds_write_b64 v97, v[98:99]
    s_waitcnt lgkmcnt(0)
    s_barrier
    ''')
    pump(Q1, q1, 8, 100)
    if wof:
        lw = k.label('nowof')
        k('''s_mul_i32 s52, s33, 14
        s_add_u32 s52, s52, s34
        s_cmp_ge_u32 s52, 196
        ''')
        k(f's_cbranch_scc1 {lw}')
        k.srd(56, 48, NBYTES['w_out'])
        k(f'''s_mul_i32 s53, s52, 9363
        s_lshr_b32 s53, s53, 16          ; fp
        s_mul_i32 s54, s53, 7
        s_sub_u32 s54, s52, s54          ; dblk
        s_lshl_b32 s54, s54, 2
        s_add_u32 s54, s54, s31          ; dt
        v_lshrrev_b32 v30, 1, v1
        v_mul_u32_u24 v30, 896, v30
        v_and_b32 v31, 1, v1
        v_lshl_add_u32 v30, v31, 4, v30
        s_mul_i32 s55, s53, 28672
        s_lshl_b32 s5, s54, 5
        s_add_u32 s55, s55, s5
        s_lshl_b32 s5, s31, 10
        s_add_u32 s5, s5, {SLOT}
        s_mov_b32 m0, s5
        v_lshlrev_b32 v31, 3, v1
        buffer_load_dwordx4 v30, s[56:59], s55 offen lds
        v_add_u32 v31, s5, v31
        ''')
        k(f'{lw}:')
    lab = k.label('nost')
    k('s_cmp_lg_u32 s34, 0')
    k(f's_cbranch_scc1 {lab}')
    k.srd(36, 28, WS['ST1'][1], WS['ST1'][0])
    k('''s_lshl_b32 s5, s33, 10
    s_add_u32 s4, s4, s5
    s_mov_b32 exec_hi, 0
    buffer_store_dwordx2 v[98:99], v96, s[36:39], s4 offen
    s_mov_b64 exec, -1
    ''')
    k(f'{lab}:')
    k('s_waitcnt vmcnt(0)')
    if wof:
        lw = k.label('nowof2')
        k('s_cmp_ge_u32 s52, 196')
        k(f's_cbranch_scc1 {lw}')
        k.srd(56, 28, WS['WOF'][1], WS['WOF'][0])
        k('''ds_read_b64_tr_b16 v[240:241], v31
        ds_read_b64_tr_b16 v[242:243], v31 offset:512
        s_mul_i32 s55, s54, 28672
        s_lshl_b32 s5, s53, 10
        s_add_u32 s55, s55, s5
        v_lshlrev_b32 v30, 4, v1
        s_waitcnt lgkmcnt(0)
        buffer_store_dwordx4 v[240:243], v30, s[56:59], s55 offen
        ''')
        k(f'{lw}:')
    for half in range(2):
        sts = range(0, 4) if half == 0 else range(4, 7)
        n = 0
        for st in sts:
            for e4 in range(4):
                if n < 14 or True:
                    k(f'ds_read_b64_tr_b16 {vr(32+8*(st%4)+2*e4,2)}, v122 offset:{st*8192 + e4*512}')
                n += 1
        k('s_waitcnt lgkmcnt(0)')
        for st in sts:
            for h in range(2):
                k(f'v_mfma_f32_16x16x32_bf16 v[24:27], v[20:23], {vr(32+8*(st%4)+4*h,4)}, {"0" if (st == 0 and h == 0) else "v[24:27]"}')
    k('s_mov_b64 exec, 0xffff')
    k('s_nop 7')
    for i in range(4): k(f'ds_write_b32 v123, v{24+i} offset:{1024 + i*256}')
    k('''s_mov_b64 exec, -1
    s_waitcnt lgkmcnt(0)
    s_barrier
    ''')
    stamp(2)
    if pf2 is not None:
        k.srd(52, 74, NBYTES['w_sp'])
        k('''s_and_b32 s4, s35, 3
        s_lshl_b32 s4, s4, 21
        s_lshr_b32 s5, s35, 2
        s_lshl_b32 s5, s5, 20
        s_add_u32 s4, s4, s5
        s_lshl_b32 s5, s3, 15
        s_add_u32 s4, s4, s5
        s_lshl_b32 s5, s31, 13
        s_add_u32 s56, s4, s5
        v_lshlrev_b32 v30, 7, v1
        ''')
    def pf_at(q):
        if pf2 is None: return
        for sg, qq in enumerate(pf2):
            if qq == q:
                lab = k.label('pf')
                k(f's_cmp_lg_u32 s31, {sg}')
                k(f's_cbranch_scc1 {lab}')
                k(f'buffer_load_dword v31, v30, s[52:55], s56 offen {pfflags}')
                k(f'{lab}:')
    NB = 3
    def wf1(q, p): return 100 + (q % NB)*8 + p*4
    def reads1(q):
        for p in range(2):
            for e2 in range(2):
                k(f'ds_read_b64_tr_b16 {vr(wf1(q,p)+2*e2,2)}, v{16+p} offset:{q*2048 + e2*512}')
    reads1(0); reads1(1)
    for q in range(28):
        if q == 2:
            colsum_fetch(1)
        if q + 2 < 28:
            reads1(q+2); k('s_waitcnt lgkmcnt(8)' if q != 2 else 's_waitcnt lgkmcnt(12)')
        else:
            k(f's_waitcnt lgkmcnt({4 if q == 26 else 0})')
        for p in range(2):
            k(f'v_mfma_f32_32x32x16_bf16 {vr(ACC+16*p,16)}, {vr(wf1(q,p),4)}, {vr(XF+4*q,4)}, {"0" if q == 0 else vr(ACC+16*p,16)}')
        pf_at(q)
    stamp(3)
    k.srd(16, 28, WS['Z1F'][1], WS['Z1F'][0])
    k(f'''v_sub_f32 v24, 0, v98
    v_sub_f32 v25, 0, v98
    v_mov_b32 v26, v99
    v_mov_b32 v27, v99
    v_bfe_u32 v28, v1, 4, 1
    v_mul_u32_u24 v28, 28672, v28
    v_and_b32 v29, 15, v1
    v_lshl_add_u32 v29, v3, 4, v29
    v_lshl_add_u32 v28, v29, 4, v28
    s_lshl_b32 s4, s33, 2
    s_add_u32 s4, s4, s31
    s_mul_i32 s4, s4, 57344
    s_lshl_b32 s5, s34, 11
    s_add_u32 s4, s4, s5
    s_waitcnt lgkmcnt(0)
    ''')
    om = {0: 0, 1: 1, 4: 2, 5: 3, 2: 4, 3: 5, 6: 6, 7: 7}
    for p in range(2):
        for i in range(8):
            A, C = vr(ACC+16*p+2*i, 2), vr(CSR+16*p+2*i, 2)
            k(f'v_pk_fma_f32 {A}, v[24:25], {C}, {A}')
            k(f'v_pk_mul_f32 {A}, {A}, v[26:27]')
            k(f'v_cvt_pk_bf16_f32 v{100+8*p+om[i]}, v{ACC+16*p+2*i}, v{ACC+16*p+2*i+1}')
        for u in range(2):
            k(f'buffer_store_dwordx4 {vr(100+8*p+4*u,4)}, v28, s[16:19], s4 offen offset:{p*1024 + u*512}')
    stamp(4)
    pf_at(99)
    if kidx is not None: stamp_end(k, kidx, 28, 30, extra=st1)
    k('s_endpgm')
    k(f'{name}_aux:')
    if cpf:
        lab = k.label('cpf2')
        k(f'''v_lshlrev_b32 v4, 7, v0
        v_cmp_gt_u32 vcc, code_end-{name}, v4
        s_and_saveexec_b64 s[42:43], vcc
        s_cbranch_execz {lab}
        global_load_dword v254, v4, s[40:41]
        {lab}:
        s_mov_b64 exec, -1
        ''')
    k('''s_sub_u32 s6, s3, 28
    s_lshl_b32 s34, s35, 2
    s_add_u32 s33, s34, s6           ; a = xcd*4 + (j-28)
    s_waitcnt lgkmcnt(0)
    s_mov_b32 s28, s78
    s_mov_b32 s29, s79
    s_cmp_lg_u32 s33, 28
    ''')
    lne = k.label('noep')
    k(f's_cbranch_scc1 {lne}')
    k('s_cmp_lg_u32 s30, 7')
    k(f's_cbranch_scc1 {lne}')
    k.srd(24, 28, WS['PART'][1], WS['PART'][0])
    k.srd(56, 76, 256)
    k(f'''v_mov_b32 v4, {EPOCH_OFF}
    v_mov_b32 v5, 0
    s_mov_b64 exec, 1
    buffer_load_dword v6, v4, s[24:27], 0 offen sc1
    s_mov_b32 s4, 1664525
    s_waitcnt vmcnt(0)
    v_mul_lo_u32 v6, v6, s4
    v_add_u32 v6, 1013904223, v6
    v_max_u32 v6, 1, v6
    buffer_store_dword v6, v5, s[56:59], 0 offen sc1
    buffer_store_dword v6, v4, s[24:27], 0 offen sc1
    s_mov_b64 exec, -1
    ''')
    k(f'{lne}:')
    k('s_cmp_ge_u32 s33, 28')
    k(f's_cbranch_scc1 {name}_aux2')
    k.srd(36, 66, NBYTES['k'])
    k.srd(40, 68, NBYTES['v'])
    k.srd(48, 70, NBYTES['shift_k'])
    k.srd(44, 28, WS['KVT'][1], WS['KVT'][0])
    VB = 520*128
    k(f'''s_mul_i32 s52, s33, 37
    s_lshr_b32 s52, s52, 8           ; sq
    s_mul_i32 s53, s52, 7
    s_sub_u32 s53, s33, s53          ; dbk
    ; DMA: wave w loads s-block w (64 rows = 8 instr) of k and v ; chunk' = (l%8) ^ w
    v_lshrrev_b32 v4, 3, v1
    v_mul_u32_u24 v4, 896, v4
    v_xor_b32 v5, s30, v1
    v_and_b32 v5, 7, v5
    v_lshl_add_u32 v4, v5, 4, v4
    s_lshl_b32 s54, s52, 9
    s_lshl_b32 s4, s30, 6
    s_add_u32 s54, s54, s4
    s_mul_i32 s54, s54, 896
    s_lshl_b32 s4, s53, 7
    s_add_u32 s54, s54, s4           ; soffset
    s_lshl_b32 s55, s30, 13          ; w*64*128
    ''')
    for i in range(8):
        k(f's_add_u32 m0, s55, {1024 + i*1024}')
        k(f's_add_u32 s4, s54, {i*7168}')
        k('buffer_load_dwordx4 v4, s[36:39], s4 offen nt lds')
        k(f's_add_u32 m0, s55, {VB + i*1024}')
        k('s_nop 0')
        k('buffer_load_dwordx4 v4, s[40:43], s4 offen nt lds')
    lh = k.label('nohalo')
    k('s_cmp_lg_u32 s30, 0')
    k(f's_cbranch_scc1 {lh}')
    k('''v_xor_b32 v6, 0x70, v4
    s_sub_u32 s4, s54, 7168
    v_add_u32 v6, s4, v6
    s_mov_b32 m0, 0
    s_nop 0
    buffer_load_dwordx4 v6, s[36:39], 0 offen lds
    ''')
    k(f'{lh}:')
    KR = 16; VR = 84; W = 150
    k(f'''; lane = (c8 = l/8, r8 = l%8): channel 8w + c8, s-block r8
    v_lshrrev_b32 v6, 3, v1          ; c8
    v_and_b32 v7, 7, v1              ; r8
    s_lshl_b32 s4, s53, 6
    s_lshl_b32 s5, s30, 3
    s_add_u32 s4, s4, s5             ; ch0
    v_add_u32 v8, s4, v6             ; ch
    v_lshlrev_b32 v9, 3, v8
    buffer_load_dwordx2 v[{W}:{W+1}], v9, s[48:51], 0 offen
    v_lshlrev_b32 v9, 12, v8
    v_lshl_add_u32 v9, v7, 4, v9
    s_lshl_b32 s52, s52, 7           ; sq*8*16
    v_xor_b32 v10, s30, v7
    v_lshlrev_b32 v10, 4, v10
    v_lshl_add_u32 v10, v6, 1, v10
    v_lshl_add_u32 v10, v7, 13, v10
    v_add_u32 v11, 7, v7
    v_and_b32 v11, 7, v11            ; (r8-1)&7
    v_xor_b32 v11, s30, v11
    v_lshlrev_b32 v11, 4, v11
    v_lshl_add_u32 v11, v6, 1, v11
    v_lshl_add_u32 v11, v7, 13, v11
    v_add_u32 v12, {VB}, v10
    s_mov_b32 s60, 0xffff0000
    ''')
    for i in range(67+64+1): k(f'v_mov_b32 v{KR+i}, 0')
    k('s_waitcnt vmcnt(0)')
    k('s_barrier')
    k(f'''v_lshlrev_b32 v{W+2}, 16, v{W}
    v_and_b32 v{W+3}, s60, v{W}
    v_lshlrev_b32 v{W+4}, 16, v{W+1}
    v_and_b32 v{W+5}, s60, v{W+1}
    ''')
    for j in range(3): k(f'ds_read_u16_d16_hi v{KR+j}, v11 offset:{(5+j)*128}')
    def kvreads(col):
        for j in range(8):
            k(f'ds_read_u16_d16_hi v{KR+3+8*col+j}, v10 offset:{1024 + (8*col+j)*128}')
        for j in range(8):
            k(f'ds_read_u16_d16_hi v{VR+8*col+j}, v12 offset:{(8*col+j)*128}')
    kvreads(0)
    for col in range(8):
        k('s_waitcnt lgkmcnt(0)')
        if col < 7: kvreads(col+1)
        T = 160
        for i in range(8):
            b = KR + 8*col + i
            k(f'v_mul_f32 v{T+i}, v{b}, v{W+5}')
            k(f'v_fmac_f32 v{T+i}, v{b+1}, v{W+4}')
            k(f'v_fmac_f32 v{T+i}, v{b+2}, v{W+3}')
            k(f'v_fmac_f32 v{T+i}, v{b+3}, v{W+2}')
            k(f'v_mul_f32 v{T+i}, v{T+i}, v{VR+8*col+i}')
        O = 168 + 4*(col % 2)
        for q in range(4): k(f'v_cvt_pk_bf16_f32 v{O+q}, v{T+2*q}, v{T+2*q+1}')
        k(f'buffer_store_dwordx4 {vr(O,4)}, v9, s[44:47], s52 offen offset:{col*512}')
    k(f's_branch {name}_aux3')
    k(f'{name}_aux2:')
    k(f'{name}_aux3:')
    if pf2 is not None or pfz is not None:
        k.srd(16, 74, NBYTES['w_sp'])
        k('''s_and_b32 s4, s35, 3
        s_lshl_b32 s4, s4, 21
        s_lshr_b32 s5, s35, 2
        s_lshl_b32 s5, s5, 20
        s_add_u32 s4, s4, s5
        s_lshl_b32 s5, s3, 15
        s_add_u32 s4, s4, s5
        s_lshl_b32 s5, s31, 13
        s_add_u32 s4, s4, s5
        v_lshlrev_b32 v30, 7, v1
        ''')
        k(f'buffer_load_dword v32, v30, s[16:19], s4 offen {pfflags}')
    if prefetch:
        k.srd(16, 74, NBYTES['w_sp'])
        k('''s_and_b32 s4, s35, 3
        s_lshl_b32 s4, s4, 21
        s_lshr_b32 s5, s35, 2
        s_lshl_b32 s5, s5, 20
        s_add_u32 s4, s4, s5
        s_sub_u32 s5, s3, 28
        s_lshl_b32 s5, s5, 18
        s_add_u32 s4, s4, s5
        s_lshl_b32 s5, s30, 15
        s_add_u32 s4, s4, s5
        v_lshlrev_b32 v30, 7, v1
        ''')
        for i in range(prefetch):
            k(f's_add_u32 s5, s4, {i*8192}')
            k(f'buffer_load_dword v{32+i}, v30, s[16:19], s5 offen')
        k('s_waitcnt vmcnt(0)')
    if kidx is not None: stamp_end(k, kidx, 28, 30, extra=[90,90,90,90,90])
    k(f'{name}_end:')
    k('s_endpgm')
    return k

if __name__ == '__main__':
    ks = [gen_k1('k1a_kernel', 0, prefetch=False, dbgstage=True), gen_k1('k1b_kernel', 1, prefetch=False, dbgstage=True)]
    build_file('k1.s', [(k.name, 256, 512, K1_LDS) for k in ks], [k.text(256) for k in ks])
```

```python
from asmlib import *
def gen_delay(evA, evB, M):
    k = Kern('delay_kernel')
    k('s_cmp_ge_u32 s2, 1')
    k('s_cbranch_scc1 delay_end')
    k(f's_load_dwordx4 s[4:7], s[0:1], {KA["dbg"]}')
    k('v_mov_b32 v2, 0')
    k('v_mov_b32 v3, 0')
    k('ds_write_b64 v2, v[2:3]')
    k('s_waitcnt lgkmcnt(0)')
    k('s_barrier')
    k.srd(8, 6, WS['TS'][1], WS['TS'][0])
    k.srd(12, 4, 256)
    k('v_lshlrev_b32 v1, 10, v0')
    for n, (ki, kind, waves, nwg) in enumerate((evA, evB)):
        k(f'v_cmp_gt_u32 vcc, {nwg}, v0')
        k('s_and_saveexec_b64 s[20:21], vcc')
        k(f's_mov_b32 s16, {ki*4096*64}')
        for w in waves:
            k(f'buffer_load_dword v4, v1, s[8:11], s16 offen offset:{w*64 + (0 if kind == "s" else 4)}')
            k('s_waitcnt vmcnt(0)')
            if kind == 's': k('v_not_b32 v4, v4')
            k(f'ds_max_u32 v2, v4 offset:{4*n}')
        k('s_mov_b64 exec, -1')
    k('s_waitcnt lgkmcnt(0)')
    k('s_barrier')
    k('ds_read_b64 v[4:5], v2')
    k('s_memrealtime s[24:25]')
    k('s_waitcnt lgkmcnt(0)')
    k('v_readfirstlane_b32 s22, v4')
    k('v_readfirstlane_b32 s23, v5')
    if evA[1] == 's': k('s_not_b32 s22, s22')
    if evB[1] == 's': k('s_not_b32 s23, s23')
    k('s_sub_u32 s22, s23, s22')
    k('s_min_u32 s22, s22, 10000')
    k('v_mov_b32 v4, s22')
    k('buffer_store_dword v4, v2, s[12:15], 0 offen')
    k(f's_mul_i32 s22, s22, {M}')
    k('delay_l:')
    k('s_memrealtime s[26:27]')
    k('s_waitcnt lgkmcnt(0)')
    k('s_sub_u32 s26, s26, s24')
    k('s_cmp_lt_u32 s26, s22')
    k('s_cbranch_scc1 delay_l')
    k('delay_end:')
    k('s_endpgm')
    return k
def add_delay(path, out, evA, evB, M):
    s = open(path).read()
    L = [l for l in s.split('\n') if l.startswith('; @launch')]
    s = s.replace(L[-1], L[-1] + '\n; @launch kernel=delay_kernel grid=(1,1,1) block=(256,1,1) lds=64')
    s = s.replace('.text\ncode_end:\n', '.text\ncode_end:\n' + gen_delay(evA, evB, M).text(16))
    open(out, 'w').write(s)
if __name__ == '__main__':
    import sys
    src = sys.argv[1]
    S1 = (0, 's', [0], 256); E1 = (0, 'e', [0, 4], 256); S2 = (1, 's', [0], 256); E2 = (1, 'e', [0], 224); E1g = (0, 'e', [0, 4], 224)
    add_delay(src, 'dl0.s', S1, E2, 0)
    add_delay(src, 'dl1.s', S1, E2, 4)
    add_delay(src, 'dl2.s', S1, E1, 4)
    add_delay(src, 'dl3.s', E1, S2, 4)
    add_delay(src, 'dl4.s', S2, E2, 4)
    add_delay(src, 'dl5.s', S1, E1g, 4)
```

```python
HEADER = """; Kernarg layout for this problem (112 bytes, ptrs only, base s[0:1]):
"""

KA = dict(q=0, k=8, v=16, shift_k=24, ssm_k=32, ssm_D=40, x_unused=48, w_in=56, w_sp=64, b_sp=72,
          w_out=80, out=88, dbg=96, ws=104)
NBYTES = dict(q=2048*448*2, k=2048*448*2, v=2048*448*2, shift_k=448*4*2, ssm_k=448*2048*2, ssm_D=448*2,
              w_in=448*1792*2, w_sp=2048*2048*2, b_sp=2048*2, w_out=896*448*2, out=2048*448*2, dbg=256)

WS = {}
_off = 0
def _ws(name, n):
    global _off
    WS[name] = (_off, n)
    _off += (n + 4095) // 4096 * 4096
_ws('Z2F', 2048*896*2)
_ws('Z1F', 2048*896*2)
_ws('PF', 2048*896*2)
_ws('WOF', 896*448*2)
_ws('KVT', 448*2048*2)
_ws('Y2T', 448*2048*2)
_ws('ST1', 2048*8)
_ws('PART', 16*4*28*512 + 4096)


class Kern:
    def __init__(self, name):
        self.name = name
        self.lines = []
        self.nlabel = 0
    def __call__(self, s):
        for l in s.split('\n'):
            l = l.strip()
            if l:
                self.lines.append('    ' + l if not l.endswith(':') else l)
    def label(self, base='L'):
        self.nlabel += 1
        return f'{self.name}_{base}{self.nlabel}'
    def srd(self, d, ptr_lo, nbytes, off=0):
        if off:
            self(f's_add_u32 s{d}, s{ptr_lo}, {off}')
            self(f's_addc_u32 s{d+1}, s{ptr_lo+1}, 0')
        else:
            self(f's_mov_b32 s{d}, s{ptr_lo}')
            self(f's_mov_b32 s{d+1}, s{ptr_lo+1}')
        self(f's_mov_b32 s{d+2}, {nbytes}')
        self(f's_mov_b32 s{d+3}, 0x00020000')
    def text(self, vgpr, sgpr=102, accum=None):
        if accum is None:
            accum = (vgpr + 3) // 4 * 4
        t = f'.text\n.globl {self.name}\n.p2align 8\n.type {self.name},@function\n{self.name}:\n'
        t += '\n'.join(self.lines) + '\n'
        t += f'''.section .rodata,"a"
.p2align 6
.amdhsa_kernel {self.name}
  .amdhsa_next_free_vgpr {vgpr}
  .amdhsa_next_free_sgpr {sgpr}
  .amdhsa_accum_offset {accum}
  .amdhsa_group_segment_fixed_size 0
  .amdhsa_kernarg_size 112
  .amdhsa_user_sgpr_count 2
  .amdhsa_user_sgpr_kernarg_segment_ptr 1
  .amdhsa_system_sgpr_workgroup_id_x 1
  .amdhsa_float_denorm_mode_32 3
.end_amdhsa_kernel
'''
        return t


def build_file(path, launches, kernels_text):
    s = HEADER
    for (n, g, b, l) in launches:
        s += f'; @launch kernel={n} grid=({g},1,1) block=({b},1,1) lds={l}\n'
    s += '.amdgcn_target "amdgcn-amd-amdhsa--gfx950"\n'
    s += ''.join(kernels_text)
    s += '.text\ncode_end:\n'
    open(path, 'w').write(s)

def vr(a, n):
    return f'v[{a}:{a+n-1}]' if n > 1 else f'v{a}'
def sr(a, n):
    return f's[{a}:{a+n-1}]' if n > 1 else f's{a}'

_ws('FLG', 8192 + 131072 + 65536)
_ws('TS', 64*2048*64)

def stamp_begin(k, s0=90):
    k(f's_memrealtime s[{s0}:{s0+1}]')
    k(f's_memtime s[{s0+2}:{s0+3}]')
def stamp_end(k, kidx, ws_lo, wave_s, s0=90, vtmp=0, extra=()):
    k('s_waitcnt vmcnt(0) lgkmcnt(0)')
    k(f's_memrealtime s[{s0+4}:{s0+5}]')
    k(f's_memtime s[{s0+6}:{s0+7}]')
    k('s_waitcnt lgkmcnt(0)')
    k(f'v_mov_b32 v{vtmp}, s{s0}')
    k(f'v_mov_b32 v{vtmp+1}, s{s0+4}')
    k(f'v_mov_b32 v{vtmp+2}, s{s0+2}')
    k(f'v_mov_b32 v{vtmp+3}, s{s0+6}')
    k.srd(s0+6 if (s0+6) % 4 == 0 else s0+4+((4-(s0+4)%4)%4), ws_lo, WS['TS'][1], WS['TS'][0])
    d = s0+6 if (s0+6) % 4 == 0 else s0+4+((4-(s0+4)%4)%4)
    k(f's_lshl_b32 s{s0}, s2, 4')
    k(f's_add_u32 s{s0}, s{s0}, s{wave_s}')
    k(f's_lshl_b32 s{s0}, s{s0}, 6')
    k(f's_add_u32 s{s0}, s{s0}, {kidx*4096*64}')
    k(f'v_mov_b32 v{vtmp+4}, 0')
    k('s_mov_b64 exec, 1')
    k(f'buffer_store_dwordx4 v[{vtmp}:{vtmp+3}], v{vtmp+4}, s[{d}:{d+3}], s{s0} offen')
    for i, e in enumerate(extra):
        k(f'v_mov_b32 v{vtmp+5}, s{e}')
        k(f'buffer_store_dword v{vtmp+5}, v{vtmp+4}, s[{d}:{d+3}], s{s0} offen offset:{16+4*i}')
        k('s_nop 1')
    k(f's_getreg_b32 s{s0+1}, hwreg(HW_REG_XCC_ID)')
    k(f'v_mov_b32 v{vtmp+5}, s{s0+1}')
    k(f'buffer_store_dword v{vtmp+5}, v{vtmp+4}, s[{d}:{d+3}], s{s0} offen offset:60')
    k('s_waitcnt vmcnt(0)')
```

```python
import sys
from asmlib import *
from k1 import gen_k1, K1_LDS
from k2_gemm import gen_gemm2_body, gen_gemm3_helper, K2F_LDS
from k1 import EPOCH_OFF
from k2_conv2 import gen_conv2_body
from k2_gemm import MISC
from k2_conv import gen_conv_body, CONV_LDS
from k3 import gen_k3, K3_LDS, K3_VGPR

def gen_k2(name='k2_kernel', kidx=None, **kw):
    k = Kern(name)
    if kidx is not None: stamp_begin(k)
    k('s_cmp_ge_u32 s2, 256')
    k(f's_cbranch_scc1 {name}_end')
    k(f's_load_dwordx2 s[28:29], s[0:1], {KA["ws"]}')
    k('v_lshrrev_b32 v1, 6, v0')
    k('s_nop 0')
    k('v_readfirstlane_b32 s30, v1')
    k('s_cmp_ge_u32 s30, 4')
    k(f's_cbranch_scc1 {name}_conv')
    k(f's_load_dwordx4 s[4:7], s[0:1], {KA["w_sp"]}')
    k('s_waitcnt lgkmcnt(0)')
    st = [] if kidx is not None else None
    gen_gemm2_body(k, stamps=st, **kw)
    if kidx is not None: stamp_end(k, kidx, 28, 30, extra=st)
    k('s_endpgm')
    k(f'{name}_conv:')
    k('s_cmp_ge_u32 s2, 224')
    k(f's_cbranch_scc1 {name}_wof')
    k(f's_load_dwordx4 s[4:7], s[0:1], {KA["ssm_k"]}')
    k('s_setprio 3')
    k('s_mov_b32 s89, s30')
    k('s_sub_u32 s30, s30, 4')
    k('s_waitcnt lgkmcnt(0)')
    gen_conv_body(k, 65536)
    if kidx is not None: stamp_end(k, kidx, 28, 89)
    k('s_endpgm')
    k(f'{name}_wof:')
    k('s_cmp_ge_u32 s2, 252')
    k(f's_cbranch_scc1 {name}_end')
    k(f's_load_dwordx2 s[4:5], s[0:1], {KA["w_out"]}')
    k('''s_setprio 3
    s_sub_u32 s30, s30, 4
    s_sub_u32 s33, s2, 224
    v_and_b32 v1, 63, v0
    s_mul_i32 s35, s30, 28672
    s_add_u32 s35, s35, 65536
    v_lshlrev_b32 v4, 4, v1
    s_mul_i32 s34, s33, 28672
    s_waitcnt lgkmcnt(0)
    ''')
    k.srd(8, 4, NBYTES['w_out'])
    k.srd(12, 28, WS['WOF'][1], WS['WOF'][0])
    for i in range(14):
        k(f'v_add_u32 v5, {64*i}, v1')
        k('v_mul_u32_u24 v6, 2341, v5')
        k('v_lshrrev_b32 v6, 16, v6')
        k('v_mul_u32_u24 v7, 28, v6')
        k('v_add_u32 v5, v5, v7')
        k('v_lshlrev_b32 v5, 4, v5')
        k(f's_add_u32 m0, s35, {i*1024}')
        k('s_mul_i32 s36, s30, 448')
        k('s_add_u32 s36, s36, s34')
        k('buffer_load_dwordx4 v5, s[8:11], s36 offen nt lds')
    k('''v_lshrrev_b32 v5, 2, v1
    v_mul_u32_u24 v5, 448, v5
    v_and_b32 v6, 3, v1
    v_lshl_add_u32 v5, v6, 3, v5
    v_add_u32 v5, s35, v5
    s_mul_i32 s36, s30, 401408       ; 14*28672
    s_lshl_b32 s37, s33, 10
    s_add_u32 s36, s36, s37
    s_waitcnt vmcnt(0)
    ''')
    for i in range(14):
        r = 8 + 4*(i % 4)
        k(f'ds_read_b64_tr_b16 v[{r}:{r+1}], v5 offset:{i*32}')
        k(f'ds_read_b64_tr_b16 v[{r+2}:{r+3}], v5 offset:{i*32 + 16*448}')
        k(f's_add_u32 s37, s36, {i*28672}')
        k('s_waitcnt lgkmcnt(0)')
        k(f'buffer_store_dwordx4 v[{r}:{r+3}], v4, s[12:15], s37 offen')
    k(f'{name}_end:')
    k('s_endpgm')
    return k

def gen_k2f(name='k2_kernel', kidx=None, cprio=0, psleep=3, **kw):
    k = Kern(name)
    if kidx is not None: stamp_begin(k)
    k('s_cmp_ge_u32 s2, 256')
    k(f's_cbranch_scc1 {name}_end')
    k(f's_load_dwordx2 s[28:29], s[0:1], {KA["ws"]}')
    k('v_lshrrev_b32 v1, 6, v0')
    k('s_nop 0')
    k('v_readfirstlane_b32 s30, v1')
    k('s_cmp_ge_u32 s30, 4')
    k(f's_cbranch_scc1 {name}_hlp')
    k(f's_load_dwordx4 s[4:7], s[0:1], {KA["w_sp"]}')
    k(f's_load_dwordx2 s[84:85], s[0:1], {KA["q"]}')
    k(f's_load_dwordx2 s[86:87], s[0:1], {KA["out"]}')
    k('s_waitcnt lgkmcnt(0)')
    k(f's_add_u32 s58, s28, {WS["PART"][0] + EPOCH_OFF}')
    k('s_addc_u32 s59, s29, 0')
    k('s_load_dword s59, s[58:59], 0')
    st = [] if kidx is not None else None
    gen_gemm2_body(k, stamps=st, fused=True, endlabel=f'{name}_gend', **kw)
    k(f'{name}_gend:')
    if kidx is not None: stamp_end(k, kidx, 28, 30, extra=st)
    k('s_endpgm')
    k(f'{name}_hlp:')
    k(f's_load_dwordx4 s[4:7], s[0:1], {KA["ssm_k"]}')
    k('s_setprio 3')
    k('s_mov_b32 s89, s30')
    k('s_sub_u32 s30, s30, 4')
    k('s_waitcnt lgkmcnt(0)')
    k(f's_add_u32 s58, s28, {WS["PART"][0] + EPOCH_OFF}')
    k('s_addc_u32 s59, s29, 0')
    k('s_load_dword s59, s[58:59], 0')
    k('s_cmp_ge_u32 s2, 224')
    k(f's_cbranch_scc1 {name}_nocv')
    gen_conv2_body(k, 65536, MISC, prio=cprio)
    k(f's_branch {name}_cvd')
    k(f'{name}_nocv:')
    k('s_barrier')
    k(f'{name}_cvd:')
    k('''s_setprio 0
    s_and_b32 s31, s2, 7
    s_lshr_b32 s32, s2, 3
    s_and_b32 s33, s31, 3
    s_lshl_b32 s33, s33, 3
    s_and_b32 s34, s32, 7
    s_add_u32 s33, s33, s34          ; tb
    s_lshr_b32 s34, s31, 2
    s_lshl_b32 s34, s34, 2
    s_lshr_b32 s35, s32, 3
    s_add_u32 s34, s34, s35          ; cb
    s_waitcnt lgkmcnt(0)
    s_cmp_eq_u32 s34, 7
    ''')
    k(f's_cbranch_scc1 {name}_end')
    st = [] if kidx is not None else None
    gen_gemm3_helper(k, stamps=st, psleep=psleep)
    if kidx is not None: stamp_end(k, kidx, 28, 89, extra=st)
    k(f'{name}_end:')
    k('s_endpgm')
    return k

MAIN = 'recurrent_scan__ssm_conv_h3__mixer_gmlp__prompt_kernel'
def gen_full(name, kidx=None, cprio=0, psleep=1, kw2={}, **kw):
    from k2_gemm import get_epoch
    k = gen_k1(name, kidx, wof=True, full=True, **kw)
    k(f'{name}_p2:')
    k.srd(52, 76, 256)
    k('s_cmp_ge_u32 s30, 4')
    k(f's_cbranch_scc1 {name}_hlp')
    k(f's_load_dwordx4 s[4:7], s[0:1], {KA["w_sp"]}')
    k(f's_load_dwordx2 s[84:85], s[0:1], {KA["q"]}')
    k(f's_load_dwordx2 s[86:87], s[0:1], {KA["out"]}')
    k('v_mov_b32 v17, 0')
    k('buffer_load_dword v16, v17, s[52:55], 0 offen sc1')
    k('s_waitcnt lgkmcnt(0)')
    st = [80, 82] if kidx is not None else None
    gen_gemm2_body(k, stamps=st, fused=True, full=True, endlabel=f'{name}_gend', **kw2)
    k(f'{name}_gend:')
    if kidx is not None: stamp_end(k, kidx, 28, 30, extra=st)
    k('s_endpgm')
    k(f'{name}_hlp:')
    k(f's_load_dwordx4 s[4:7], s[0:1], {KA["ssm_k"]}')
    k('v_mov_b32 v101, 0')
    k('buffer_load_dword v100, v101, s[52:55], 0 offen sc1')
    k('s_mov_b32 s89, s30')
    k('s_sub_u32 s30, s30, 4')
    k('s_waitcnt lgkmcnt(0)')
    k('s_cmp_ge_u32 s2, 224')
    k(f's_cbranch_scc1 {name}_nocv')
    gen_conv2_body(k, 65536, MISC, prio=cprio, full=True)
    k(f's_branch {name}_cvd')
    k(f'{name}_nocv:')
    k('s_waitcnt vmcnt(0)')
    k('s_barrier')
    get_epoch(k, 100, 101)
    k(f'{name}_cvd:')
    k('''s_setprio 0
    s_and_b32 s31, s2, 7
    s_lshr_b32 s32, s2, 3
    s_and_b32 s33, s31, 3
    s_lshl_b32 s33, s33, 3
    s_and_b32 s34, s32, 7
    s_add_u32 s33, s33, s34          ; tb
    s_lshr_b32 s34, s31, 2
    s_lshl_b32 s34, s34, 2
    s_lshr_b32 s35, s32, 3
    s_add_u32 s34, s34, s35          ; cb
    s_cmp_eq_u32 s34, 7
    ''')
    k(f's_cbranch_scc1 {name}_end')
    st = [80, 82] if kidx is not None else None
    gen_gemm3_helper(k, stamps=st, psleep=psleep, full=True)
    if kidx is not None: stamp_end(k, kidx, 28, 89, extra=st)
    k(f'{name}_end:')
    k('s_endpgm')
    return k

def build_full(path, ts, aslist=True, **kw):
    from k1 import FULL_LDS
    k = gen_full(MAIN, 0 if ts else None, **kw)
    build_file(path, [(MAIN, 256, 512, FULL_LDS)], [k.text(256)])
    if not aslist:
        s = open(path).read().replace(f'; @launch kernel={MAIN} grid', '; @launch grid')
        open(path, 'w').write(s)

def build_f(path, ts, kw2={}, **kw):
    k1 = gen_k1('k1_kernel', 0 if ts else None, wof=True, **kw)
    k2 = gen_k2f('k2_kernel', 1 if ts else None, **kw2)
    build_file(path, [('k1_kernel', 256, 512, K1_LDS), ('k2_kernel', 256, 512, K2F_LDS)], [k1.text(256), k2.text(256)])

def build(path, ts, kw2={}, **kw):
    k1 = gen_k1('k1_kernel', 0 if ts else None, **kw)
    k2 = gen_k2('k2_kernel', 1 if ts else None, **kw2)
    k3 = gen_k3('k3_kernel', 2 if ts else None)
    build_file(path, [('k1_kernel', 256, 512, K1_LDS), ('k2_kernel', 256, 384, 65536 + CONV_LDS), ('k3_kernel', 224, 512, K3_LDS)],
               [k1.text(256), k2.text(256), k3.text(**K3_VGPR)])
DEF = dict(kw2=dict(rot=0), prefetch=0)
if __name__ == '__main__':
    build('full_ts.s', True, **DEF)
    build_f('fus_ts.s', True, **DEF)
    build_f('fus.s', False, **DEF)
    build('recurrent_scan__ssm_conv_h3__mixer_gmlp__prompt.s', False, **DEF)
```

```python
from asmlib import *
import struct
def f32(x): return '0x%08x' % struct.unpack('<I', struct.pack('<f', x))[0]
EPOCH_OFF = 16*4*28*512
SLOT = 24576; WZ1 = 98304; SCR = 155648
XS2 = SCR; CSF = SCR + 1024; CSP = SCR + 3072
K1_LDS = SCR + 1024 + 2048 + 2048
SPIN_MAX = 1 << 14
SYNC = 163328
FULL_LDS = 163840
GC1 = -2*0.7978845608028654*1.4426950408889634
GC2 = GC1*0.044715

def round_bf16_single(k, dst, src):
    k(f'v_cvt_pk_bf16_f32 v{dst}, v{src}, v{src}')
    k(f'v_lshlrev_b32 v{dst}, 16, v{dst}')

def ln_stats(k, S1, S2, n, MB, RS, T):
    k(f'v_mul_f32 v{MB}, {f32(1.0/n)}, v{S1}')
    k(f'v_mul_f32 v{T}, {f32(1.0/n)}, v{S2}')
    k(f'v_fma_f32 v{T}, -v{MB}, v{MB}, v{T}')
    k(f'v_max_f32 v{T}, 0, v{T}')
    round_bf16_single(k, T, T)
    k(f'v_add_f32 v{T}, {f32(1e-5)}, v{T}')
    round_bf16_single(k, T, T)
    k(f'v_sqrt_f32 v{T}, v{T}')
    round_bf16_single(k, MB, MB)
    round_bf16_single(k, T, T)
    k(f'v_rcp_f32 v{RS}, v{T}')
    k('s_nop 0')

class Seq:
    def __init__(self, k): self.k = k; self.seq = []
    def issue(self, tag, lines, n):
        for l in lines: self.k(l)
        self.seq.append((tag, n))
    def wait_for(self, tag):
        idx = max(i for i, (t, n) in enumerate(self.seq) if t == tag)
        self.k(f's_waitcnt vmcnt({sum(n for t, n in self.seq[idx+1:])})')
    def copy(self):
        s = Seq(self.k); s.seq = list(self.seq); return s

def gen_k1(name='k1_kernel', kidx=None, prefetch=4, dbgstage=False, rotate=True, pf2=None, pfflags='', pfz=None, w1s=(5,5,5,5,6,6,6,6), cpf=True, wof=False, full=False):
    k = Kern(name)
    SC = 'sc1' if full else ''
    def mkstamp(lst):
        def stamp(i, stage=False):
            if full:
                if i not in (1, 4): return
                i = (1, 4).index(i)
            if kidx is not None and stage == dbgstage:
                k(f's_memtime s[{80+2*i}:{81+2*i}]')
                k('s_waitcnt lgkmcnt(0)')
                lst.append(80+2*i)
        return stamp
    if kidx is not None: stamp_begin(k)
    k('s_cmp_ge_u32 s2, 256')
    k(f's_cbranch_scc1 {name}_end')
    k('s_load_dwordx8 s[64:71], s[0:1], 0')
    if cpf:
        lab = k.label('cpf')
        k(f'''s_getpc_b64 s[40:41]
        {name}_pc:
        s_sub_u32 s40, s40, {name}_pc-{name}
        s_subb_u32 s41, s41, 0
        s_lshr_b32 s3, s2, 3
        s_lshl_b32 s3, s3, 10
        v_lshlrev_b32 v1, 7, v0
        v_add_u32 v1, s3, v1
        v_cmp_gt_u32 vcc, 8, v0
        s_and_saveexec_b64 s[42:43], vcc
        s_cbranch_execz {lab}
        global_load_dword v255, v1, s[40:41]
        {lab}:
        s_mov_b64 exec, -1
        ''')
    k(f's_load_dwordx4 s[72:75], s[0:1], {KA["w_in"]}')
    k(f's_load_dwordx4 s[76:79], s[0:1], {KA["dbg"]}')
    if wof: k(f's_load_dwordx2 s[48:49], s[0:1], {KA["w_out"]}')
    k('''v_lshrrev_b32 v1, 6, v0
    v_and_b32 v2, 31, v0             ; l%32
    v_readfirstlane_b32 s30, v1      ; wave
    v_and_b32 v1, 63, v0             ; lane
    v_lshrrev_b32 v3, 5, v1          ; hi
    s_and_b32 s31, s30, 3            ; sg
    s_lshr_b32 s32, s30, 2           ; role
    s_and_b32 s35, s2, 7             ; xcd
    s_lshr_b32 s3, s2, 3             ; j
    ''')
    if full:
        k(f'''v_and_b32 v28, 7, v0
        v_lshlrev_b32 v28, 2, v28
        v_add_u32 v28, {SYNC}, v28
        v_mov_b32 v29, 0
        ds_write_b32 v28, v29
        ''')
    k('s_cmp_ge_u32 s3, 28')
    k(f's_cbranch_scc1 {name}_aux')
    k('''s_mul_i32 s33, s3, 37
    s_lshr_b32 s33, s33, 8           ; j/7
    s_mul_i32 s34, s33, 7
    s_sub_u32 s34, s3, s34           ; j%7
    s_lshl_b32 s4, s33, 1
    s_add_u32 s4, s4, s34
    s_add_u32 s4, s4, s35            ; rot = j%7 + 2*(j/7) + xcd  (< 21)
    s_and_b32 s7, s35, 3
    s_lshl_b32 s7, s7, 2
    s_add_u32 s33, s33, s7
    s_lshr_b32 s7, s35, 2
    s_mul_i32 s7, s7, 7
    s_add_u32 s34, s34, s7           ; cb = 7*(xcd>>2) + j%7
    v_lshrrev_b32 v28, 3, v1         ; l/8
    v_lshrrev_b32 v29, 4, v1         ; l>>4
    v_xor_b32 v30, v29, v1
    v_and_b32 v30, 7, v30            ; x chunk (h=0)
    v_mul_u32_u24 v7, 896, v28
    v_lshl_add_u32 v4, v30, 4, v7
    v_xor_b32 v30, 4, v30
    v_lshl_add_u32 v5, v30, 4, v7
    v_add_u32 v5, 7168, v5
    v_and_b32 v29, 1, v29
    v_lshlrev_b32 v29, 2, v29
    v_xor_b32 v30, v29, v1
    v_and_b32 v30, 7, v30            ; w chunk
    v_mul_u32_u24 v6, 3584, v28
    v_lshl_add_u32 v6, v30, 4, v6
    s_mul_i32 s44, s30, 28672        ; 8*w*3584
    s_add_u32 s44, s44, 1792
    v_add_u32 v126, s44, v6
    s_lshl_b32 s7, s33, 7
    s_lshl_b32 s5, s30, 4
    s_add_u32 s7, s7, s5
    s_mul_i32 s6, s7, 896
    s_lshl_b32 s44, s34, 7
    s_lshl_b32 s61, s30, 11          ; w*2048
    s_lshl_b32 s45, s30, 10          ; w*1024
    ''')
    for _ in range(2):
        k('s_cmp_ge_u32 s4, 7')
        k('s_cselect_b32 s5, 7, 0')
        k('s_sub_u32 s4, s4, s5')
    if not rotate: k('s_mov_b32 s4, 0')
    XO = [16, 17, 18, 19, 20, 21, 22]; WO = [23, 24, 25, 26, 27, 46, 47]
    for pos in range(7):
        k(f's_lshl_b32 s5, s4, 7')
        k(f's_add_u32 s{XO[pos]}, s5, s6')
        k(f's_mul_i32 s5, s4, {64*3584}')
        k(f's_add_u32 s{WO[pos]}, s5, s44')
        if pos < 6:
            k('s_add_u32 s4, s4, 1')
            k('s_cmp_eq_u32 s4, 7')
            k('s_cselect_b32 s4, 0, s4')
    k('''s_waitcnt lgkmcnt(0)
    s_mov_b32 s28, s78
    s_mov_b32 s29, s79
    ''')
    k.srd(8, 64, NBYTES['q'])
    k.srd(12, 72, NBYTES['w_in'])
    def dma_items(pos):
        slot = pos % 4
        return [(f'D{pos}', [f's_add_u32 m0, s61, {slot*SLOT}', 's_nop 0', f'buffer_load_dwordx4 v4, s[8:11], s{XO[pos]} offen lds']),
                (f'D{pos}', [f's_add_u32 m0, s45, {slot*SLOT + 16384}', 's_nop 0', f'buffer_load_dwordx4 v126, s[12:15], s{WO[pos]} offen lds']),
                (f'D{pos}', [f's_add_u32 m0, s61, {slot*SLOT + 1024}', 's_nop 0', f'buffer_load_dwordx4 v5, s[8:11], s{XO[pos]} offen lds'])]
    Q = Seq(k)
    for pos in range(2):
        for tag, l in dma_items(pos): Q.issue(tag, l, 1)
        if pos == 0: k('s_barrier')
    def mk_queue(extra):
        q = []
        for pos in range(2, 7):
            for tag, l in dma_items(pos): q.append((max(0, pos-3), tag, l))
        return q + extra
    def pump(Qx, q, st, n=1):
        for _ in range(n):
            if q and q[0][0] <= st:
                _, tag, l = q.pop(0)
                Qx.issue(tag, l, 1)
    k('''v_lshrrev_b32 v28, 1, v2
    v_and_b32 v28, 7, v28            ; f(row)
    v_xor_b32 v28, v28, v3           ; ^hi
    v_lshlrev_b32 v28, 4, v28
    v_lshl_add_u32 v28, v2, 7, v28
    s_lshl_b32 s5, s31, 12           ; sg*32*128
    v_add_u32 v8, s5, v28
    v_xor_b32 v9, 32, v8
    v_xor_b32 v10, 64, v8
    v_xor_b32 v11, 0x60, v8
    v_add_u32 v12, 0xc000, v8
    v_add_u32 v13, 0xc000, v9
    v_add_u32 v14, 0xc000, v10
    v_add_u32 v15, 0xc000, v11
    v_bfe_u32 v29, v1, 2, 2          ; r
    v_lshl_add_u32 v30, v3, 3, v29   ; 8kg + r
    v_lshlrev_b32 v30, 7, v30
    v_and_b32 v25, 3, v1
    v_lshlrev_b32 v25, 3, v25        ; 8c
    v_bfe_u32 v24, v1, 4, 1          ; fhalf
    v_lshl_add_u32 v26, v24, 5, v25
    v_lshrrev_b32 v27, 1, v29        ; r>>1
    v_lshl_add_u32 v26, v27, 6, v26
    v_add_u32 v16, v30, v26          ; p=0
    v_xor_b32 v17, 64, v16           ; p=1
    s_mov_b32 s60, 0xffff0000
    s_cmp_eq_u32 s32, 1
    ''')
    k(f's_cbranch_scc1 {name}_z1')
    ACC = 32; CSR = 64
    def colsum_fetch(part):
        k(f'''v_lshlrev_b32 v96, 4, v1
        v_add_u32 v96, {CSP + part*1024}, v96
        ds_read_b128 v[64:67], v96
        s_lshl_b32 s4, s30, 8
        s_add_u32 s4, s4, {CSF}
        v_lshlrev_b32 v96, 2, v1
        v_add_u32 v96, s4, v96
        v_lshlrev_b32 v97, 4, v3
        v_add_u32 v97, s4, v97
        s_waitcnt lgkmcnt(0)
        v_add_f32 v64, v64, v65
        v_add_f32 v66, v66, v67
        v_add_f32 v64, v64, v66
        ds_write_b32 v96, v64
        s_waitcnt lgkmcnt(0)
        ''')
        for p in range(2):
            for j in range(4):
                k(f'ds_read_b128 {vr(CSR+16*p+4*j,4)}, v97 offset:{p*128 + j*32}')
    st2 = []; stamp = mkstamp(st2)
    Q2 = Q.copy()
    q2 = mk_queue([])
    k.srd(56, 76, 256)
    k('''v_add_u32 v18, 0x10000, v16      ; slots 2,3 : 49152 + 16384
    v_add_u32 v19, 0x10000, v17
    v_add_u32 v16, 0x4000, v16
    v_add_u32 v17, 0x4000, v17
    v_mov_b32 v221, 0
    ''')
    q2 += [(3, 'EP', ['buffer_load_dword v223, v221, s[56:59], 0 offen sc1'])]
    if pfz is not None:
        k.srd(52, 74, NBYTES['w_sp'])
        k('''s_and_b32 s4, s35, 3
        s_lshl_b32 s4, s4, 21
        s_lshr_b32 s5, s35, 2
        s_lshl_b32 s5, s5, 20
        s_add_u32 s4, s4, s5
        s_lshl_b32 s5, s3, 15
        s_add_u32 s4, s4, s5
        s_lshl_b32 s5, s31, 13
        s_add_u32 s40, s4, s5
        v_lshlrev_b32 v220, 7, v1
        ''')
    if pfz is not None:
        n = len(pfz)
        for i, stg in enumerate(pfz):
            lanes = 64 // n
            m = ((1 << lanes) - 1) << (i*lanes)
            q2.append((stg, 'PF', [f's_mov_b32 exec_lo, {hex(m & 0xffffffff)}', f's_mov_b32 exec_hi, {hex(m >> 32)}',
                                   f'buffer_load_dword v222, v220, s[52:55], s40 offen {pfflags}', 's_mov_b64 exec, -1']))
    FRB = [64, 128]
    def xf(st, ks): return FRB[st % 2] + ks*12
    def wf(st, ks, p): return FRB[st % 2] + ks*12 + 4 + p*4
    stamp(0)
    def mm(st, ks, p):
        first = (st == 0 and ks == 0)
        k(f'v_mfma_f32_32x32x16_bf16 {vr(ACC+16*p,16)}, {vr(wf(st,ks,p),4)}, {vr(xf(st,ks),4)}, {"0" if first else vr(ACC+16*p,16)}')
    for st in range(7):
        slot = st % 4
        hs, so = slot // 2, (slot % 2) * SLOT
        Q2.wait_for(f'D{st}')
        k('s_barrier')
        if st in (0, 1, 2, 4, 6): stamp({0:0, 1:1, 2:2, 4:3, 6:4}[st], True)
        for ks in range(4):
            if st: mm(st-1, ks, 0)
            k(f'ds_read_b128 {vr(xf(st,ks),4)}, v{8+4*hs+ks} offset:{so}')
            for p in range(2):
                for e2 in range(2):
                    k(f'ds_read_b64_tr_b16 {vr(wf(st,ks,p)+2*e2,2)}, v{16+2*hs+p} offset:{so + ks*2048 + e2*512}')
            if st: mm(st-1, ks, 1)
            pump(Q2, q2, st, 2 if st == 0 else 1)
        k('s_waitcnt lgkmcnt(0)')
    for ks in range(4):
        for p in range(2): mm(6, ks, p)
    pump(Q2, q2, 7, 100)
    stamp(1)
    k(f'''s_lshl_b32 s4, s31, 8
    s_add_u32 s4, s4, {XS2}
    v_lshlrev_b32 v102, 3, v2
    v_add_u32 v102, s4, v102
    v_mov_b32 v98, 0
    v_mov_b32 v99, 0
    v_mov_b32 v100, 0
    v_mov_b32 v101, 0
    s_barrier
    ds_read_b64 v[24:25], v102
    ''')
    colsum_fetch(0)
    k(f'''v_mul_f32 v108, v25, v25
    v_mul_f32 v106, {f32(GC1)}, v25
    v_mul_f32 v108, v108, v106
    v_mul_f32 v108, {f32(0.044715)}, v108
    v_sub_f32 v104, 0, v24
    v_sub_f32 v105, 0, v24
    v_mov_b32 v107, v106
    v_mov_b32 v109, v108
    s_mov_b32 s62, 1.0
    s_mov_b32 s63, 1.0
    ''')
    for g in range(4):
        k(f's_waitcnt lgkmcnt({6-2*g})')
        P = [(vr(ACC+2*i,2), vr(CSR+2*i,2), CSR+2*i) for i in range(4*g, 4*g+4)]
        for A, C, c in P: k(f'v_pk_fma_f32 {A}, v[104:105], {C}, {A}')
        for A, C, c in P: k(f'v_pk_mul_f32 {C}, {A}, {A}')
        for A, C, c in P: k(f'v_pk_fma_f32 {C}, {C}, v[108:109], v[106:107]')
        for A, C, c in P: k(f'v_pk_mul_f32 {C}, {C}, {A}')
        for A, C, c in P:
            k(f'v_exp_f32 v{c}, v{c}'); k(f'v_exp_f32 v{c+1}, v{c+1}')
        for A, C, c in P: k(f'v_pk_add_f32 {C}, {C}, s[62:63]')
        for A, C, c in P:
            k(f'v_rcp_f32 v{c}, v{c}'); k(f'v_rcp_f32 v{c+1}, v{c+1}')
        for A, C, c in P: k(f'v_pk_mul_f32 {A}, {A}, {C}')
        for A, C, c in P:
            k(f'v_pk_add_f32 v[98:99], v[98:99], {A}')
            k(f'v_pk_fma_f32 v[100:101], {A}, {A}, v[100:101]')
    k.srd(24, 28, WS['PART'][1], WS['PART'][0])
    k('''v_add_f32 v98, v98, v99
    v_add_f32 v100, v100, v101
    v_mul_f32 v98, v98, v25
    v_mul_f32 v100, v100, v25
    v_mul_f32 v100, v100, v25        ; S2 partial
    v_mov_b32 v99, v98
    v_mov_b32 v101, v100
    v_mov_b32 v103, v25
    ''')
    Q2.wait_for('EP')
    k('''    v_permlane32_swap_b32 v98, v99
    v_permlane32_swap_b32 v100, v101
    s_nop 0
    v_add_f32 v98, v98, v99
    v_add_f32 v100, v100, v101
    ''')
    lp, ok = k.label('eppoll'), k.label('epok')
    k(f's_mov_b32 s5, {SPIN_MAX}')
    k(f'{lp}:')
    k('v_readfirstlane_b32 s61, v223')
    k('s_cmp_lg_u32 s61, 0')
    k(f's_cbranch_scc1 {ok}')
    k('s_sub_u32 s5, s5, 1')
    k('s_cmp_eq_u32 s5, 0')
    k(f's_cbranch_scc1 {ok}')
    k('s_sleep 2')
    k('buffer_load_dword v223, v221, s[56:59], 0 offen sc1')
    k('s_waitcnt vmcnt(0)')
    k(f's_branch {lp}')
    k(f'{ok}:')
    k('''v_mov_b32 v99, s61
    v_mov_b32 v101, s61
    s_lshl_b32 s4, s33, 2
    s_add_u32 s4, s4, s31
    s_mul_i32 s36, s4, 7168          ; (rb*4+sg)*14*512
    s_add_u32 s37, s36, 4096
    s_lshl_b32 s4, s34, 9
    s_add_u32 s4, s4, s36
    v_lshlrev_b32 v97, 4, v1
    s_mov_b32 exec_hi, 0
    buffer_store_dwordx4 v[98:101], v97, s[24:27], s4 offen sc1
    s_mov_b64 exec, -1
    s_barrier
    ''')
    stamp(2)
    k.srd(20, 28, WS['Z2F'][1], WS['Z2F'][0])
    k('''v_mul_u32_u24 v28, 72, v2
    v_lshl_add_u32 v28, v3, 3, v28
    s_lshl_b32 s4, s31, 14
    v_add_u32 v28, s4, v28
    v_lshrrev_b32 v70, 4, v1
    v_bfe_u32 v65, v1, 2, 2
    v_lshl_add_u32 v70, v70, 3, v65
    v_mul_u32_u24 v70, 72, v70
    v_and_b32 v65, 3, v1
    v_lshl_add_u32 v70, v65, 3, v70
    v_add_u32 v70, s4, v70
    s_lshl_b32 s4, s33, 2
    s_add_u32 s4, s4, s31
    s_mul_i32 s4, s4, 57344          ; ks*56*1024
    s_lshl_b32 s5, s34, 12
    s_add_u32 s38, s4, s5
    ''')
    stamp(3)
    G = 128
    lp, ok = k.label('stpoll'), k.label('stok')
    k(f's_mov_b32 s5, {SPIN_MAX}')
    k(f'{lp}:')
    for i in range(7):
        k(f'buffer_load_dwordx4 {vr(G+4*i,4)}, v97, s[24:27], s{36+i//4} offen offset:{(i%4)*1024} sc1')
    k('s_sub_u32 s5, s5, 1')
    k('s_waitcnt vmcnt(0)')
    k(f'v_max3_u32 v64, v{G+1}, v{G+3}, v99')
    k(f'v_min3_u32 v65, v{G+1}, v{G+3}, v99')
    for i in range(1, 7):
        k(f'v_max3_u32 v64, v{G+4*i+1}, v{G+4*i+3}, v64')
        k(f'v_min3_u32 v65, v{G+4*i+1}, v{G+4*i+3}, v65')
    k('v_cmp_ne_u32 vcc, v64, v65')
    k('s_cmp_eq_u32 s5, 0')
    k(f's_cbranch_scc1 {ok}')
    k('s_nop 2')
    k(f's_cbranch_vccz {ok}')
    k('s_sleep 2')
    k(f's_branch {lp}')
    k(f'{ok}:')
    stamp(4)
    for c in (0, 2):
        k(f'v_add_f32 v{G+c}, v{G+c}, v{G+4+c}')
        k(f'v_add_f32 v{G+8+c}, v{G+8+c}, v{G+12+c}')
        k(f'v_add_f32 v{G+16+c}, v{G+16+c}, v{G+20+c}')
        k(f'v_add_f32 v{G+c}, v{G+c}, v{G+24+c}')
        k(f'v_add_f32 v{G+8+c}, v{G+8+c}, v{G+16+c}')
        k(f'v_add_f32 v{G+c}, v{G+c}, v{G+8+c}')
        k(f'v_mov_b32 v{G+c+1}, v{G+c}')
    k(f'''s_nop 1
    v_permlane32_swap_b32 v{G}, v{G+1}
    v_permlane32_swap_b32 v{G+2}, v{G+3}
    s_nop 0
    v_add_f32 v64, v{G}, v{G+1}
    v_add_f32 v65, v{G+2}, v{G+3}
    ''')
    ln_stats(k, 64, 65, 896, 24, 25, 66)
    k('''v_mul_f32 v24, v24, v25          ; m*r
    v_mul_f32 v25, v25, v103         ; r*rs1
    ''')
    for p in range(2):
        for j in range(4):
            for h in range(4):
                a = ACC+16*p+4*j+h
                k(f'v_fma_f32 v{a}, v{a}, v25, -v24')
            for h in range(2):
                a = ACC+16*p+4*j+2*h
                k(f'v_cvt_pk_bf16_f32 v{66+2*((4*p+j)%2)+h}, v{a}, v{a+1}')
            k(f'ds_write_b64 v28, {vr(66+2*((4*p+j)%2),2)} offset:{p*2304 + j*16}')
        k('s_waitcnt lgkmcnt(0)')
        for ftl in range(2):
            for e2 in range(2):
                k(f'ds_read_b64_tr_b16 {vr(128+8*p+4*ftl+2*e2,2)}, v70 offset:{p*2304 + e2*288 + ftl*32}')
    for t in range(4):
        k(f's_waitcnt lgkmcnt({max(0, 2*(3-t)) if t >= 2 else 4})')
        k(f'buffer_store_dwordx4 {vr(128+4*t,4)}, v97, s[20:23], s38 offen offset:{t*1024} {SC}')
    if full:
        k('s_lshl_b32 s88, s34, 11')
        k('s_lshl_b32 s4, s33, 7')
        k('s_add_u32 s88, s88, s4')
        k('s_add_u32 s88, s88, 139264')
        k(f's_branch {name}_p2')
    else:
        if kidx is not None: stamp_end(k, kidx, 28, 30, extra=st2)
        k('s_endpgm')
    k(f'{name}_z1:')
    st1 = []; stamp = mkstamp(st1)
    Q1 = Q.copy()
    w1q = []
    for pos in range(7):
        for h in range(2):
            w1q.append((w1s[len(w1q)] if len(w1q) < len(w1s) else 8, 'W1', [f's_add_u32 m0, s62, {WZ1 + pos*8192 + h*1024}', 's_nop 0', f'buffer_load_dwordx4 v{124+h}, s[12:15], s{WO[pos]} offen lds']))
    q1 = mk_queue(w1q)
    XF = 128
    k(f'''v_add_u32 v16, {WZ1}, v16
    v_add_u32 v17, {WZ1}, v17
    s_mul_i32 s4, s31, 57344         ; 16*sg*3584
    v_add_u32 v124, s4, v6
    v_add_u32 v125, 28672, v124
    s_lshl_b32 s62, s31, 11          ; sg*2048
    v_lshrrev_b32 v26, 4, v1         ; G
    v_lshl_add_u32 v25, v26, 5, v25
    v_lshlrev_b32 v27, 6, v27
    v_xor_b32 v25, v25, v27
    v_lshl_add_u32 v25, v29, 7, v25
    v_add_u32 v120, s62, v25
    v_add_u32 v121, 0x10000, v120    ; slots 2,3 (+16384)
    v_add_u32 v122, 0x18000, v120    ; WZ1
    v_add_u32 v120, 0x4000, v120     ; slots 0,1 (+16384)
    ; selector4: ones if (l%16) == l/16
    v_and_b32 v29, 15, v1
    v_cmp_eq_u32 vcc, v29, v26
    v_mov_b32 v29, 0x3f803f80
    v_bfe_u32 v25, v1, 2, 1
    v_cndmask_b32 v20, 0, v29, vcc
    v_cndmask_b32 v21, 0, v29, vcc
    v_cndmask_b32 v22, 0, v29, vcc
    v_cndmask_b32 v23, 0, v29, vcc
    v_cmp_eq_u32 vcc, v25, v24
    s_lshl_b32 s4, s31, 2
    s_add_u32 s4, s4, {CSP}
    v_cndmask_b32 v116, 0, v29, vcc
    v_cndmask_b32 v117, 0, v29, vcc
    v_cndmask_b32 v118, 0, v29, vcc
    v_cndmask_b32 v119, 0, v29, vcc
    v_lshlrev_b32 v123, 4, v1
    v_add_u32 v123, s4, v123
    ''')
    stamp(0)
    GR = 32; RSUM = 48; CF = [64, 72]
    def xstats(st, pst):
        for ks in range(4):
            x = vr(XF+16*st+4*ks, 4)
            first = (st == 0 and ks == 0)
            k(f'v_mfma_f32_32x32x16_bf16 {vr(GR,16)}, {x}, {x}, {"0" if first else vr(GR,16)}')
            pump(Q1, q1, pst)
            k(f'v_mfma_f32_16x16x32_bf16 {vr(RSUM,4)}, v[116:119], {x}, {"0" if first else vr(RSUM,4)}')
            if ks < 2:
                k(f'v_mfma_f32_16x16x32_bf16 v[24:27], v[20:23], {vr(CF[st%2]+4*ks,4)}, {"0" if first else "v[24:27]"}')
    for st in range(7):
        slot = st % 4
        hs, so = slot // 2, (slot % 2) * SLOT
        if st in (1, 2, 3, 5, 6): stamp({1:0, 2:1, 3:2, 5:3, 6:4}[st], True)
        Q1.wait_for(f'D{st}')
        k('s_barrier')
        for ks in range(4):
            k(f'ds_read_b128 {vr(XF+16*st+4*ks,4)}, v{8+4*hs+ks} offset:{so}')
        for e4 in range(4):
            k(f'ds_read_b64_tr_b16 {vr(CF[st%2]+2*e4,2)}, v{120+hs} offset:{so + e4*512}')
        if st == 0: pump(Q1, q1, st, 6)
        else: xstats(st-1, st)
        k('s_waitcnt lgkmcnt(0)')
    xstats(6, 7)
    pump(Q1, q1, 7, 100)
    stamp(1)
    k('s_mov_b64 exec, 0xffff')
    for i in range(4): k(f'ds_write_b32 v123, v{24+i} offset:{i*256}')
    k('s_mov_b64 exec, -1')
    k('s_nop 7')
    masks = [(0xaaaaaaaa, 1), (0xcccccccc, 2), (0xff00ff00, 4), (0xffff0000, 8)]
    for m, d in masks:
        k(f's_mov_b32 vcc_lo, {hex(m)}')
        k(f's_mov_b32 vcc_hi, {hex(m)}')
        for i in range(0, 16, 2*d):
            k(f'v_cndmask_b32 v{GR+i}, v{GR+i}, v{GR+i+d}, vcc')
    k(f'''s_mov_b32 vcc_lo, 0x0f0f0f0f
    s_mov_b32 vcc_hi, 0xf0f0f0f0
    v_cndmask_b32 v30, 0, v{GR}, vcc
    v_cndmask_b32 v31, 0, v{GR}, vcc
    s_lshl_b32 s4, s31, 8
    s_add_u32 s5, s4, {XS2}
    v_permlane32_swap_b32 v30, v31
    v_lshlrev_b32 v96, 3, v2
    v_add_u32 v97, s5, v96
    v_add_f32 v30, v30, v31
    ''')
    ln_stats(k, RSUM, 30, 448, 98, 99, 29)
    k('''ds_write_b64 v97, v[98:99]
    s_waitcnt lgkmcnt(0)
    s_barrier
    ''')
    pump(Q1, q1, 8, 100)
    if wof:
        lw = k.label('nowof')
        k('''s_mul_i32 s52, s33, 14
        s_add_u32 s52, s52, s34
        s_cmp_ge_u32 s52, 196
        ''')
        k(f's_cbranch_scc1 {lw}')
        k.srd(56, 48, NBYTES['w_out'])
        k(f'''s_mul_i32 s53, s52, 9363
        s_lshr_b32 s53, s53, 16          ; fp
        s_mul_i32 s54, s53, 7
        s_sub_u32 s54, s52, s54          ; dblk
        s_lshl_b32 s54, s54, 2
        s_add_u32 s54, s54, s31          ; dt
        v_lshrrev_b32 v30, 1, v1
        v_mul_u32_u24 v30, 896, v30
        v_and_b32 v31, 1, v1
        v_lshl_add_u32 v30, v31, 4, v30
        s_mul_i32 s55, s53, 28672
        s_lshl_b32 s5, s54, 5
        s_add_u32 s55, s55, s5
        s_lshl_b32 s5, s31, 10
        s_add_u32 s5, s5, {3*SLOT}
        s_mov_b32 m0, s5
        v_lshlrev_b32 v31, 3, v1
        buffer_load_dwordx4 v30, s[56:59], s55 offen lds
        v_add_u32 v31, s5, v31
        ''')
        k(f'{lw}:')
    lab = k.label('nost')
    k('s_cmp_lg_u32 s34, 0')
    k(f's_cbranch_scc1 {lab}')
    k.srd(36, 28, WS['ST1'][1], WS['ST1'][0])
    k(f'''s_lshl_b32 s5, s33, 10
    s_add_u32 s4, s4, s5
    s_mov_b32 exec_hi, 0
    buffer_store_dwordx2 v[98:99], v96, s[36:39], s4 offen {SC}
    s_mov_b64 exec, -1
    ''')
    k(f'{lab}:')
    k('s_waitcnt vmcnt(0)')
    if wof:
        lw = k.label('nowof2')
        k('s_cmp_ge_u32 s52, 196')
        k(f's_cbranch_scc1 {lw}')
        k.srd(56, 28, WS['WOF'][1], WS['WOF'][0])
        k(f'''ds_read_b64_tr_b16 v[240:241], v31
        ds_read_b64_tr_b16 v[242:243], v31 offset:512
        s_mul_i32 s55, s54, 28672
        s_lshl_b32 s5, s53, 10
        s_add_u32 s55, s55, s5
        v_lshlrev_b32 v30, 4, v1
        s_waitcnt lgkmcnt(0)
        buffer_store_dwordx4 v[240:243], v30, s[56:59], s55 offen {SC}
        ''')
        k(f'{lw}:')
    for half in range(2):
        sts = range(0, 4) if half == 0 else range(4, 7)
        n = 0
        for st in sts:
            for e4 in range(4):
                if n < 14 or True:
                    k(f'ds_read_b64_tr_b16 {vr(32+8*(st%4)+2*e4,2)}, v122 offset:{st*8192 + e4*512}')
                n += 1
        k('s_waitcnt lgkmcnt(0)')
        for st in sts:
            for h in range(2):
                k(f'v_mfma_f32_16x16x32_bf16 v[24:27], v[20:23], {vr(32+8*(st%4)+4*h,4)}, {"0" if (st == 0 and h == 0) else "v[24:27]"}')
    k('s_mov_b64 exec, 0xffff')
    k('s_nop 7')
    for i in range(4): k(f'ds_write_b32 v123, v{24+i} offset:{1024 + i*256}')
    k('''s_mov_b64 exec, -1
    s_waitcnt lgkmcnt(0)
    s_barrier
    ''')
    stamp(2)
    if pf2 is not None:
        k.srd(52, 74, NBYTES['w_sp'])
        k('''s_and_b32 s4, s35, 3
        s_lshl_b32 s4, s4, 21
        s_lshr_b32 s5, s35, 2
        s_lshl_b32 s5, s5, 20
        s_add_u32 s4, s4, s5
        s_lshl_b32 s5, s3, 15
        s_add_u32 s4, s4, s5
        s_lshl_b32 s5, s31, 13
        s_add_u32 s56, s4, s5
        v_lshlrev_b32 v30, 7, v1
        ''')
    def pf_at(q):
        if pf2 is None: return
        for sg, qq in enumerate(pf2):
            if qq == q:
                lab = k.label('pf')
                k(f's_cmp_lg_u32 s31, {sg}')
                k(f's_cbranch_scc1 {lab}')
                k(f'buffer_load_dword v31, v30, s[52:55], s56 offen {pfflags}')
                k(f'{lab}:')
    NB = 3
    def wf1(q, p): return 100 + (q % NB)*8 + p*4
    def reads1(q):
        for p in range(2):
            for e2 in range(2):
                k(f'ds_read_b64_tr_b16 {vr(wf1(q,p)+2*e2,2)}, v{16+p} offset:{q*2048 + e2*512}')
    reads1(0); reads1(1)
    for q in range(28):
        if q == 2:
            colsum_fetch(1)
        if q + 2 < 28:
            reads1(q+2); k('s_waitcnt lgkmcnt(8)' if q != 2 else 's_waitcnt lgkmcnt(12)')
        else:
            k(f's_waitcnt lgkmcnt({4 if q == 26 else 0})')
        for p in range(2):
            k(f'v_mfma_f32_32x32x16_bf16 {vr(ACC+16*p,16)}, {vr(wf1(q,p),4)}, {vr(XF+4*q,4)}, {"0" if q == 0 else vr(ACC+16*p,16)}')
        pf_at(q)
    stamp(3)
    k.srd(16, 28, WS['Z1F'][1], WS['Z1F'][0])
    k(f'''v_sub_f32 v24, 0, v98
    v_sub_f32 v25, 0, v98
    v_mov_b32 v26, v99
    v_mov_b32 v27, v99
    v_bfe_u32 v28, v1, 4, 1
    v_mul_u32_u24 v28, 28672, v28
    v_and_b32 v29, 15, v1
    v_lshl_add_u32 v29, v3, 4, v29
    v_lshl_add_u32 v28, v29, 4, v28
    s_lshl_b32 s4, s33, 2
    s_add_u32 s4, s4, s31
    s_mul_i32 s4, s4, 57344
    s_lshl_b32 s5, s34, 11
    s_add_u32 s4, s4, s5
    s_waitcnt lgkmcnt(0)
    ''')
    om = {0: 0, 1: 1, 4: 2, 5: 3, 2: 4, 3: 5, 6: 6, 7: 7}
    for p in range(2):
        for i in range(8):
            A, C = vr(ACC+16*p+2*i, 2), vr(CSR+16*p+2*i, 2)
            k(f'v_pk_fma_f32 {A}, v[24:25], {C}, {A}')
            k(f'v_pk_mul_f32 {A}, {A}, v[26:27]')
            k(f'v_cvt_pk_bf16_f32 v{100+8*p+om[i]}, v{ACC+16*p+2*i}, v{ACC+16*p+2*i+1}')
        for u in range(2):
            k(f'buffer_store_dwordx4 {vr(100+8*p+4*u,4)}, v28, s[16:19], s4 offen offset:{p*1024 + u*512} {SC}')
    stamp(4)
    if cpf and not full:
        k(f'''s_lshl_b32 s4, s3, 2
        s_add_u32 s4, s4, s31
        s_lshl_b32 s4, s4, 9
        s_add_u32 s4, s4, {name}_end-{name}
        v_lshlrev_b32 v30, 7, v1
        v_add_u32 v30, s4, v30
        v_min_u32 v30, code_end-{name}-4, v30
        s_mov_b64 exec, 0xf
        global_load_dword v31, v30, s[40:41]
        s_mov_b64 exec, -1
        ''')
    pf_at(99)
    if full:
        k('s_lshl_b32 s88, s34, 11')
        k('s_lshl_b32 s4, s33, 7')
        k('s_add_u32 s88, s88, s4')
        k('s_add_u32 s88, s88, 139264')
        k(f's_branch {name}_p2')
    else:
        if kidx is not None: stamp_end(k, kidx, 28, 30, extra=st1)
        k('s_endpgm')
    k(f'{name}_aux:')
    if cpf:
        lab = k.label('cpf2')
        k(f'''v_lshlrev_b32 v4, 7, v0
        v_cmp_gt_u32 vcc, code_end-{name}, v4
        s_and_saveexec_b64 s[42:43], vcc
        s_cbranch_execz {lab}
        global_load_dword v254, v4, s[40:41]
        {lab}:
        s_mov_b64 exec, -1
        ''')
    k('''s_sub_u32 s6, s3, 28
    s_lshl_b32 s34, s35, 2
    s_add_u32 s33, s34, s6           ; a = xcd*4 + (j-28)
    s_waitcnt lgkmcnt(0)
    s_mov_b32 s28, s78
    s_mov_b32 s29, s79
    s_cmp_lg_u32 s33, 28
    ''')
    lne = k.label('noep')
    k(f's_cbranch_scc1 {lne}')
    k('s_cmp_lg_u32 s30, 7')
    k(f's_cbranch_scc1 {lne}')
    k.srd(24, 28, WS['PART'][1], WS['PART'][0])
    k.srd(56, 76, 256)
    k(f'''v_mov_b32 v4, {EPOCH_OFF}
    v_mov_b32 v5, 0
    s_mov_b64 exec, 1
    buffer_load_dword v6, v4, s[24:27], 0 offen sc1
    s_mov_b32 s4, 1664525
    s_waitcnt vmcnt(0)
    v_mul_lo_u32 v6, v6, s4
    v_add_u32 v6, 1013904223, v6
    v_max_u32 v6, 1, v6
    buffer_store_dword v6, v5, s[56:59], 0 offen sc1
    buffer_store_dword v6, v4, s[24:27], 0 offen sc1
    s_mov_b64 exec, -1
    ''')
    k(f'{lne}:')
    k('s_cmp_ge_u32 s33, 28')
    k(f's_cbranch_scc1 {name}_aux2')
    k.srd(36, 66, NBYTES['k'])
    k.srd(40, 68, NBYTES['v'])
    k.srd(48, 70, NBYTES['shift_k'])
    k.srd(44, 28, WS['KVT'][1], WS['KVT'][0])
    VB = 520*128
    k(f'''s_mul_i32 s52, s33, 37
    s_lshr_b32 s52, s52, 8           ; sq
    s_mul_i32 s53, s52, 7
    s_sub_u32 s53, s33, s53          ; dbk
    ; DMA: wave w loads s-block w (64 rows = 8 instr) of k and v ; chunk' = (l%8) ^ w
    v_lshrrev_b32 v4, 3, v1
    v_mul_u32_u24 v4, 896, v4
    v_xor_b32 v5, s30, v1
    v_and_b32 v5, 7, v5
    v_lshl_add_u32 v4, v5, 4, v4
    s_lshl_b32 s54, s52, 9
    s_lshl_b32 s4, s30, 6
    s_add_u32 s54, s54, s4
    s_mul_i32 s54, s54, 896
    s_lshl_b32 s4, s53, 7
    s_add_u32 s54, s54, s4           ; soffset
    s_lshl_b32 s55, s30, 13          ; w*64*128
    ''')
    for i in range(8):
        k(f's_add_u32 m0, s55, {1024 + i*1024}')
        k(f's_add_u32 s4, s54, {i*7168}')
        k('buffer_load_dwordx4 v4, s[36:39], s4 offen nt lds')
        k(f's_add_u32 m0, s55, {VB + i*1024}')
        k('s_nop 0')
        k('buffer_load_dwordx4 v4, s[40:43], s4 offen nt lds')
    lh = k.label('nohalo')
    k('s_cmp_lg_u32 s30, 0')
    k(f's_cbranch_scc1 {lh}')
    k('''v_xor_b32 v6, 0x70, v4
    s_sub_u32 s4, s54, 7168
    v_add_u32 v6, s4, v6
    s_mov_b32 m0, 0
    s_nop 0
    buffer_load_dwordx4 v6, s[36:39], 0 offen lds
    ''')
    k(f'{lh}:')
    KR = 16; VR = 84; W = 150
    k(f'''; lane = (c8 = l/8, r8 = l%8): channel 8w + c8, s-block r8
    v_lshrrev_b32 v6, 3, v1          ; c8
    v_and_b32 v7, 7, v1              ; r8
    s_lshl_b32 s4, s53, 6
    s_lshl_b32 s5, s30, 3
    s_add_u32 s4, s4, s5             ; ch0
    v_add_u32 v8, s4, v6             ; ch
    v_lshlrev_b32 v9, 3, v8
    buffer_load_dwordx2 v[{W}:{W+1}], v9, s[48:51], 0 offen
    v_lshlrev_b32 v9, 12, v8
    v_lshl_add_u32 v9, v7, 4, v9
    s_lshl_b32 s52, s52, 7           ; sq*8*16
    v_xor_b32 v10, s30, v7
    v_lshlrev_b32 v10, 4, v10
    v_lshl_add_u32 v10, v6, 1, v10
    v_lshl_add_u32 v10, v7, 13, v10
    v_add_u32 v11, 7, v7
    v_and_b32 v11, 7, v11            ; (r8-1)&7
    v_xor_b32 v11, s30, v11
    v_lshlrev_b32 v11, 4, v11
    v_lshl_add_u32 v11, v6, 1, v11
    v_lshl_add_u32 v11, v7, 13, v11
    v_add_u32 v12, {VB}, v10
    s_mov_b32 s60, 0xffff0000
    ''')
    for i in range(67+64+1): k(f'v_mov_b32 v{KR+i}, 0')
    k('s_waitcnt vmcnt(0)')
    k('s_barrier')
    k(f'''v_lshlrev_b32 v{W+2}, 16, v{W}
    v_and_b32 v{W+3}, s60, v{W}
    v_lshlrev_b32 v{W+4}, 16, v{W+1}
    v_and_b32 v{W+5}, s60, v{W+1}
    ''')
    for j in range(3): k(f'ds_read_u16_d16_hi v{KR+j}, v11 offset:{(5+j)*128}')
    def kvreads(col):
        for j in range(8):
            k(f'ds_read_u16_d16_hi v{KR+3+8*col+j}, v10 offset:{1024 + (8*col+j)*128}')
        for j in range(8):
            k(f'ds_read_u16_d16_hi v{VR+8*col+j}, v12 offset:{(8*col+j)*128}')
    kvreads(0)
    for col in range(8):
        k('s_waitcnt lgkmcnt(0)')
        if col < 7: kvreads(col+1)
        T = 160
        for i in range(8):
            b = KR + 8*col + i
            k(f'v_mul_f32 v{T+i}, v{b}, v{W+5}')
            k(f'v_fmac_f32 v{T+i}, v{b+1}, v{W+4}')
            k(f'v_fmac_f32 v{T+i}, v{b+2}, v{W+3}')
            k(f'v_fmac_f32 v{T+i}, v{b+3}, v{W+2}')
            k(f'v_mul_f32 v{T+i}, v{T+i}, v{VR+8*col+i}')
        O = 168 + 4*(col % 2)
        for q in range(4): k(f'v_cvt_pk_bf16_f32 v{O+q}, v{T+2*q}, v{T+2*q+1}')
        k(f'buffer_store_dwordx4 {vr(O,4)}, v9, s[44:47], s52 offen offset:{col*512} {SC}')
    if full:
        k('s_lshl_b32 s88, s53, 9')
        k('s_add_u32 s88, s88, s52')
        k('s_add_u32 s88, s88, 172032')
        k('s_barrier')
    k(f's_branch {name}_aux3')
    k(f'{name}_aux2:')
    if full:
        k('s_lshl_b32 s88, s33, 7')
        k('s_add_u32 s88, s88, 172032')
    k(f'{name}_aux3:')
    if pf2 is not None or pfz is not None:
        k.srd(16, 74, NBYTES['w_sp'])
        k('''s_and_b32 s4, s35, 3
        s_lshl_b32 s4, s4, 21
        s_lshr_b32 s5, s35, 2
        s_lshl_b32 s5, s5, 20
        s_add_u32 s4, s4, s5
        s_lshl_b32 s5, s3, 15
        s_add_u32 s4, s4, s5
        s_lshl_b32 s5, s31, 13
        s_add_u32 s4, s4, s5
        v_lshlrev_b32 v30, 7, v1
        ''')
        k(f'buffer_load_dword v32, v30, s[16:19], s4 offen {pfflags}')
    if prefetch:
        k.srd(16, 74, NBYTES['w_sp'])
        k('''s_and_b32 s4, s35, 3
        s_lshl_b32 s4, s4, 21
        s_lshr_b32 s5, s35, 2
        s_lshl_b32 s5, s5, 20
        s_add_u32 s4, s4, s5
        s_sub_u32 s5, s3, 28
        s_lshl_b32 s5, s5, 18
        s_add_u32 s4, s4, s5
        s_lshl_b32 s5, s30, 15
        s_add_u32 s4, s4, s5
        v_lshlrev_b32 v30, 7, v1
        ''')
        for i in range(prefetch):
            k(f's_add_u32 s5, s4, {i*8192}')
            k(f'buffer_load_dword v{32+i}, v30, s[16:19], s5 offen')
        k('s_waitcnt vmcnt(0)')
    if full:
        if kidx is not None:
            k('s_memtime s[80:81]')
            k('s_memtime s[82:83]')
            k('s_waitcnt lgkmcnt(0)')
        return k
    if kidx is not None: stamp_end(k, kidx, 28, 30, extra=[90,90,90,90,90])
    k(f'{name}_end:')
    k('s_endpgm')
    return k

if __name__ == '__main__':
    ks = [gen_k1('k1a_kernel', 0, prefetch=False, dbgstage=True), gen_k1('k1b_kernel', 1, prefetch=False, dbgstage=True)]
    build_file('k1.s', [(k.name, 256, 512, K1_LDS) for k in ks], [k.text(256) for k in ks])
```

```python
from asmlib import *
from k2_conv import GS, G_BYTES, U_BYTES, CH_BYTES, CONV_LDS

def gen_conv2_body(k, lds_base, stage_base, prio=0, full=False):
    from k2_gemm import get_epoch, poll_flags, lds_wait
    from k1 import SYNC
    k.srd(8, 4, NBYTES['ssm_k'])
    k.srd(12, 28, WS['KVT'][1], WS['KVT'][0])
    k(f'''s_and_b32 s31, s30, 1
    s_lshr_b32 s32, s30, 1           ; hf
    s_lshl_b32 s33, s2, 1
    s_add_u32 s33, s33, s31          ; ch
    s_lshl_b32 s34, s33, 12          ; ch*4096
    s_mul_i32 s35, s31, {CH_BYTES}
    s_add_u32 s35, s35, {lds_base}   ; CB
    s_add_u32 s36, s35, {G_BYTES}    ; UB
    v_and_b32 v1, 63, v0             ; lane
    v_lshlrev_b32 v2, 4, v1          ; l*16
    s_lshl_b32 s37, s32, 11
    s_add_u32 s37, s37, s34
    ''')
    H = 16
    for it in range(2):
        k(f'buffer_load_dwordx4 {vr(H+4*it,4)}, v2, s[8:11], s37 offen offset:{it*1024}')
    k('''s_add_u32 s37, s34, 2032
    s_load_dwordx4 s[40:43], s[4:5], s37
    s_and_b32 s37, s33, -2
    s_lshl_b32 s37, s37, 1
    s_load_dword s38, s[6:7], s37
    v_mov_b32 v4, 0x7fff0000
    s_mul_i32 s44, s32, 192
    s_mul_i32 s45, s32, 3072
    s_add_u32 s45, s45, s36
    v_add_u32 v3, s44, v1
    ''')
    if full:
        k('s_waitcnt vmcnt(2)')
        k('s_barrier')
        get_epoch(k, 100, 101)
        k.srd(16, 28, WS['FLG'][1], WS['FLG'][0])
        k('''s_lshr_b32 s46, s33, 6
        s_lshl_b32 s46, s46, 9
        s_add_u32 s46, s46, 172032
        v_and_b32 v5, 3, v1
        v_lshlrev_b32 v5, 7, v5
        v_mov_b32 v6, s59
        s_mov_b64 exec, 0xf
        ''')
        poll_flags(k, 7, 5, 16, 's46', 6, 4)
        k('s_mov_b64 exec, -1')
    for i in range(3):
        k(f'v_add_u32 v5, {64*i}, v3')
        k('v_mul_u32_u24 v6, 1366, v5')
        k('v_lshrrev_b32 v6, 16, v6')
        k('v_mul_u32_u24 v7, 48, v6')
        k('v_sub_u32 v7, v5, v7')
        k('v_cmp_gt_u32 vcc, 16, v7')
        k('v_lshlrev_b32 v6, 5, v6')
        k('v_add_u32 v6, v6, v7')
        k('v_lshlrev_b32 v6, 4, v6')
        k('v_subrev_u32 v6, 256, v6')
        k(f's_add_u32 m0, s45, {i*1024}')
        k('v_cndmask_b32 v6, v6, v4, vcc')
        k(f'buffer_load_dwordx4 v6, s[12:15], s34 offen {"sc1" if full else ""} lds')
    k(f's_setprio {prio}')
    k.srd(16, 28, WS['Y2T'][1], WS['Y2T'][0])
    k(f'''v_lshrrev_b32 v9, 2, v1
    v_mul_u32_u24 v9, {GS*16}, v9
    v_and_b32 v10, 3, v1
    v_lshl_add_u32 v9, v10, 4, v9
    v_add_u32 v9, s35, v9
    v_mov_b32 v12, 0
    v_mov_b32 v13, 0
    v_mov_b32 v14, 0
    v_mov_b32 v15, 0
    s_mov_b32 exec_hi, 0
    ds_write_b128 v9, v[12:15]
    s_mov_b64 exec, -1
    s_lshl_b32 s37, s32, 11
    s_add_u32 s37, s37, s35
    v_add_u32 v9, s37, v2
    s_mov_b32 s39, 0xffff
    s_waitcnt lgkmcnt(0)
    s_cmp_eq_u32 s32, 0
    s_cselect_b32 s40, 0, s40
    s_cselect_b32 s41, 0, s41
    s_cselect_b32 s42, 0, s42
    s_cselect_b32 s43, 0, s43
    ''')
    E0, E1, O0, O1 = 48, 57, 64, 73
    PV = 12
    for it in range(2):
        k(f's_waitcnt vmcnt({3 + 1 - it})')
        C = H + 4*it
        for d in range(4):
            if it: k(f'v_readlane_b32 s{40+d}, v{C-4+d}, 63')
        for d in range(4):
            k(f'v_mov_b32_dpp v{PV+d}, v{C+d} wave_shr:1 row_mask:0xf bank_mask:0xf')
        for d in range(4):
            k(f'v_writelane_b32 v{PV+d}, s{40+d}, 0')
        def Dr(j): return PV + j if j < 4 else C + j - 4
        def R(i, dst):
            if i % 2: k(f'v_alignbit_b32 v{dst}, v{Dr((i-1)//2)}, v{Dr((i-1)//2)}, 16')
            else: k(f'v_bfi_b32 v{dst}, s39, v{Dr(i//2)}, v{Dr(i//2-1)}')
        for x in range(0, 6): R(14-2*x, E0+x)
        for x in range(1, 7): R(14-2*x, E1+x)
        for x in range(0, 6): R(15-2*x, O0+x)
        for x in range(1, 7): R(15-2*x, O1+x)
        for c in range(8):
            if c % 2 == 0:
                x0 = (6-c)//2; base = E0 if x0 % 2 == 0 else E1
            else:
                x0 = (7-c)//2; base = O0 if x0 % 2 == 0 else O1
            k(f'ds_write_b128 v9, {vr(base+x0,4)} offset:{(c*GS + 4 + 64*it)*16}')
    k(f'''v_and_b32 v10, 7, v1             ; i%8
    v_mul_u32_u24 v10, {GS}, v10
    v_bfe_u32 v11, v1, 3, 1          ; i/8
    v_add_u32 v10, v10, v11
    v_lshrrev_b32 v11, 4, v1         ; kg
    v_sub_u32 v10, v10, v11
    v_lshlrev_b32 v10, 4, v10
    s_lshl_b32 s40, s32, 5
    s_add_u32 s40, s40, s35
    s_add_u32 s40, s40, 64
    v_add_u32 v10, s40, v10
    v_mul_u32_u24 v12, 48, v11
    v_and_b32 v13, 15, v1            ; n
    v_add_u32 v12, v12, v13
    v_lshlrev_b32 v12, 4, v12
    v_add_u32 v11, s36, v12
    ''')
    if full:
        k(f'''s_lshl_b32 s46, s31, 2
        s_add_u32 s46, s46, {SYNC + 8}
        v_mov_b32 v8, s46
        v_mov_b32 v9, 1
        s_waitcnt vmcnt(0) lgkmcnt(0)
        s_mov_b64 exec, 1
        ds_add_u32 v8, v9 offset:8
        s_mov_b64 exec, -1
        ''')
        lds_wait(k, 8, 9, 2, off=8)
    else:
        k(f'''s_lshl_b32 s46, s31, 2
        s_add_u32 s46, s46, {stage_base + 9216}
        v_mov_b32 v8, s46
        v_mov_b32 v9, 0
        ds_write_b32 v8, v9
        s_waitcnt vmcnt(0) lgkmcnt(0)
        s_barrier
        ''')
    ACC = 80
    def acc(ct, rr): return ACC + (ct*2+rr)*4
    NA = 5; AB = 96
    NB = 4; BB = 116
    def af(tau): return AB + (tau % NA)*4
    def bfr(t, ct): return BB + (((t+1) % NB)*2 + ct)*4
    def reads(t):
        out = [f'ds_read_b128 {vr(af(t+1),4)}, v10 offset:{64*(t+1)}']
        for ct in range(2):
            if ct == 0 and t > 30: continue
            if t % 2 == 0:
                a = t//2; imm = (16*ct - a + 16)*16
            else:
                a = (t-1)//2; imm = (4*48 + 16*ct - a - 1 + 16)*16
            out.append(f'ds_read_b128 {vr(bfr(t,ct),4)}, v11 offset:{imm}')
        return out
    T = 63; D = 3
    for t in range(-1, -1+D):
        for l in reads(t): k(l)
    started = set()
    for t in range(-1, T):
        if t + D < T:
            for l in reads(t+D): k(l)
        k(f's_waitcnt lgkmcnt({sum(len(reads(u)) for u in range(t+1, min(T, t+D+1)))})')
        for ct in (1, 0):
            if ct == 0 and t > 30: continue
            for rr in range(2):
                tau = t + rr
                if tau < 0: continue
                c = vr(acc(ct,rr),4) if (ct, rr) in started else '0'
                started.add((ct, rr))
                k(f'v_mfma_f32_16x16x32_bf16 {vr(acc(ct,rr),4)}, {vr(af(tau),4)}, {vr(bfr(t,ct),4)}, {c}')
    k(f'''v_lshrrev_b32 v12, 5, v1         ; g/2
    v_mul_u32_u24 v12, 48, v12
    v_add_u32 v12, v12, v13
    v_lshlrev_b32 v12, 4, v12
    v_bfe_u32 v14, v1, 4, 1
    v_lshl_add_u32 v12, v14, 3, v12
    s_mul_i32 s40, s32, {2*48*16}
    s_add_u32 s40, s40, s36
    v_add_u32 v12, s40, v12
    ''')
    UQ = 16
    for ct in range(2):
        for rr in range(2):
            k(f'ds_read_b64 {vr(UQ+(ct*2+rr)*2,2)}, v12 offset:{(4*rr*48 + 16*ct + 16)*16}')
    k(f'''s_mul_i32 s41, s31, 4608
    s_add_u32 s41, s41, {stage_base}
    v_mul_u32_u24 v14, 144, v13
    v_lshrrev_b32 v15, 4, v1
    v_lshl_add_u32 v14, v15, 3, v14
    s_lshl_b32 s40, s32, 5
    s_add_u32 s40, s40, s41
    v_add_u32 v14, s40, v14
    s_lshl_b32 s40, s38, 16
    s_and_b32 s42, s38, 0xffff0000
    s_bitcmp1_b32 s33, 0
    s_cselect_b32 s40, s42, s40      ; D as f32
    s_mov_b32 s42, 0xffff0000
    s_waitcnt lgkmcnt(0)
    ''')
    for ct in range(2):
        for rr in range(2):
            a = acc(ct, rr); u = UQ + (ct*2+rr)*2
            for h in range(2):
                k(f'v_lshlrev_b32 v40, 16, v{u+h}')
                k(f'v_and_b32 v41, s42, v{u+h}')
                k(f'v_fmac_f32 v{a+2*h}, s40, v40')
                k(f'v_fmac_f32 v{a+2*h+1}, s40, v41')
                k(f'v_cvt_pk_bf16_f32 v{u+h}, v{a+2*h}, v{a+2*h+1}')
            k(f'ds_write_b64 v14, {vr(u,2)} offset:{ct*16*144 + rr*64}')
    k.srd(8, 28, WS['FLG'][1], WS['FLG'][0])
    lp, ok = k.label('cvp'), k.label('cvo')
    k(f'''v_mov_b32 v9, 1
    s_waitcnt lgkmcnt(0)
    s_mov_b64 exec, 1
    ds_add_u32 v8, v9
    s_mov_b64 exec, -1
    v_lshrrev_b32 v15, 3, v1
    v_mul_u32_u24 v15, 144, v15
    v_and_b32 v12, 7, v1
    v_lshl_add_u32 v15, v12, 4, v15
    s_mul_i32 s40, s32, {16*144}
    s_add_u32 s40, s40, s41
    v_add_u32 v15, s40, v15
    s_lshl_b32 s40, s32, 11
    s_add_u32 s40, s40, s34
    s_mov_b32 s43, 0x100000
    {lp}:
    ds_read_b32 v9, v8
    s_sub_u32 s43, s43, 1
    s_waitcnt lgkmcnt(0)
    v_readfirstlane_b32 s42, v9
    s_cmp_eq_u32 s43, 0
    s_cbranch_scc1 {ok}
    s_cmp_ge_u32 s42, 2
    s_cbranch_scc1 {ok}
    s_sleep 2
    s_branch {lp}
    {ok}:
    ds_read_b128 v[24:27], v15
    ds_read_b128 v[28:31], v15 offset:{8*144}
    s_waitcnt lgkmcnt(1)
    buffer_store_dwordx4 v[24:27], v2, s[16:19], s40 offen sc1
    s_waitcnt lgkmcnt(0)
    buffer_store_dwordx4 v[28:31], v2, s[16:19], s40 offen offset:1024 sc1
    s_lshl_b32 s40, s33, 3
    s_lshl_b32 s41, s32, 2
    s_add_u32 s40, s40, s41
    s_add_u32 s40, s40, 4096
    v_mov_b32 v4, 0
    v_mov_b32 v5, s59
    s_waitcnt vmcnt(0)
    s_mov_b64 exec, 1
    buffer_store_dword v5, v4, s[8:11], s40 offen sc1
    s_mov_b64 exec, -1
    ''')
```

```python
from asmlib import *
from k1 import f32, GC1, GC2, SPIN_MAX, SYNC
MISC = 144384; YT = MISC; TR = MISC + 8192; K2F_LDS = TR + 4*2304

def get_epoch(k, vE, vZ):
    lp, ok = k.label('ep'), k.label('epk')
    k(f's_mov_b32 s57, {SPIN_MAX}')
    k(f'{lp}:')
    k(f'v_readfirstlane_b32 s59, v{vE}')
    k('s_cmp_lg_u32 s59, 0')
    k(f's_cbranch_scc1 {ok}')
    k('s_sub_u32 s57, s57, 1')
    k('s_cmp_eq_u32 s57, 0')
    k(f's_cbranch_scc1 {ok}')
    k('s_sleep 2')
    k(f'buffer_load_dword v{vE}, v{vZ}, s[52:55], 0 offen sc1')
    k('s_waitcnt vmcnt(0)')
    k(f's_branch {lp}')
    k(f'{ok}:')

def poll_flags(k, vdst, vaddr, srd, soff, vE, sleep, cnt=57, n=1):
    lp, ok = k.label('pl'), k.label('plk')
    k(f's_mov_b32 s{cnt}, {SPIN_MAX}')
    k(f'{lp}:')
    op = {1: 'dword', 4: 'dwordx4'}[n]
    k(f'buffer_load_{op} {vr(vdst,n)}, v{vaddr}, s[{srd}:{srd+3}], {soff} offen sc1')
    k(f's_sub_u32 s{cnt}, s{cnt}, 1')
    k('s_waitcnt vmcnt(0)')
    if n == 4:
        for i in range(4): k(f'v_xor_b32 v{vdst+i}, v{vdst+i}, v{vE}')
        k(f'v_or3_b32 v{vdst}, v{vdst}, v{vdst+1}, v{vdst+2}')
        k(f'v_or_b32 v{vdst}, v{vdst}, v{vdst+3}')
        k(f'v_cmp_ne_u32 vcc, 0, v{vdst}')
    else:
        k(f'v_cmp_ne_u32 vcc, v{vdst}, v{vE}')
    k(f's_cmp_eq_u32 s{cnt}, 0')
    k(f's_cbranch_scc1 {ok}')
    k('s_nop 2')
    k(f's_cbranch_vccz {ok}')
    k(f's_sleep {sleep}')
    k(f's_branch {lp}')
    k(f'{ok}:')

def lds_wait(k, vaddr, vtmp, target, stmp=56, cnt=57, off=0):
    lp, ok = k.label('lw'), k.label('lwk')
    k(f's_mov_b32 s{cnt}, 0x100000')
    k(f'{lp}:')
    k(f'ds_read_b32 v{vtmp}, v{vaddr} offset:{off}')
    k(f's_sub_u32 s{cnt}, s{cnt}, 1')
    k('s_waitcnt lgkmcnt(0)')
    k(f'v_readfirstlane_b32 s{stmp}, v{vtmp}')
    k(f's_cmp_eq_u32 s{cnt}, 0')
    k(f's_cbranch_scc1 {ok}')
    k(f's_cmp_ge_u32 s{stmp}, {target}')
    k(f's_cbranch_scc1 {ok}')
    k('s_sleep 1')
    k(f's_branch {lp}')
    k(f'{ok}:')

def handoff_gemm(k, dbg=False, mid=None):
    k('s_waitcnt vmcnt(0)')
    if dbg:
        k('s_memtime s[80:81]')
        k('s_waitcnt lgkmcnt(0)')
    k('s_barrier')
    if dbg:
        k('s_memtime s[82:83]')
        k('s_waitcnt lgkmcnt(0)')
    get_epoch(k, 16, 17)
    k.srd(44, 28, WS['FLG'][1], WS['FLG'][0])
    k(f'v_mov_b32 v18, {SYNC}')
    other, done, nf = k.label('ho'), k.label('hd'), k.label('nf')
    k('s_cmp_lg_u32 s30, 0')
    k(f's_cbranch_scc1 {nf}')
    k('''v_mov_b32 v19, s59
    v_lshlrev_b32 v20, 2, v1
    s_mov_b32 exec_hi, 0
    buffer_store_dword v19, v20, s[44:47], s88 offen sc1
    s_mov_b64 exec, -1
    ''')
    k(f'{nf}:')
    mid()
    k('s_cmp_lg_u32 s30, 0')
    k(f's_cbranch_scc1 {other}')
    k('''    s_mul_i32 s40, s34, 7
    s_add_u32 s41, s40, 6
    s_lshr_b32 s40, s40, 2           ; c0
    s_lshr_b32 s41, s41, 2           ; c1
    s_sub_u32 s41, s41, s40
    s_lshl_b32 s41, s41, 4
    s_add_u32 s41, s41, 15           ; n-1
    s_lshl_b32 s40, s40, 4
    v_min_u32 v20, s41, v1
    v_add_u32 v20, s40, v20
    s_lshr_b32 s40, s33, 1
    v_writelane_b32 v20, s40, 48
    v_lshlrev_b32 v20, 7, v20
    s_mov_b32 s40, 139264
    s_mov_b32 exec_hi, 0x1ffff
    ''')
    poll_flags(k, 21, 20, 44, 's40', 19, 2)
    k('s_mov_b64 exec, -1')
    k('v_mov_b32 v19, 1')
    k('ds_write_b32 v18, v19')
    k(f's_branch {done}')
    k(f'{other}:')
    lds_wait(k, 18, 19, 1)
    k(f'{done}:')

def gen_gemm2_body(k, lds_base=0, zflags='', wflags='', no_mfma=False, no_epi=False, rot=8, stamps=None, lead=0, fused=False, endlabel=None, psleep=2, cbar=0, full=False):
    ACC = 16; ZB = 128; WB = 212
    def acc(ft, j): return ACC + (ft*4 + j)*4
    def zf(b, ft): return ZB + b*28 + ft*4
    def wf(b, j): return WB + b*16 + j*4
    def stamp(i):
        if stamps is not None:
            k(f's_memtime s[{70+2*i}:{71+2*i}]')
            k('s_waitcnt lgkmcnt(0)')
            stamps.append(70+2*i)
    k.srd(8, 4, NBYTES['w_sp'])
    k.srd(12, 28, WS['Z2F'][1], WS['Z2F'][0])
    k.srd(16, 28, WS['Z1F'][1], WS['Z1F'][0])
    k.srd(20, 28, WS['PF'][1], WS['PF'][0])
    k.srd(24, 6, NBYTES['b_sp'])
    k('''s_and_b32 s31, s2, 7
    s_lshr_b32 s32, s2, 3
    s_and_b32 s33, s31, 3
    s_lshl_b32 s33, s33, 3
    s_and_b32 s34, s32, 7
    s_add_u32 s33, s33, s34          ; tb
    s_lshr_b32 s34, s31, 2
    s_lshl_b32 s34, s34, 2
    s_lshr_b32 s35, s32, 3
    s_add_u32 s34, s34, s35          ; cb
    v_and_b32 v1, 63, v0             ; lane
    v_and_b32 v2, 15, v0             ; l%16
    v_lshrrev_b32 v3, 4, v1          ; l/16
    v_lshlrev_b32 v4, 4, v1          ; l*16 (Z0)
    v_add_u32 v5, 0x1000, v4         ; Z1
    ; DMA source (even instr: rows 0-7 of tile, odd: rows 8-15): row8 = l/8, pos = l%8, chunk = pos ^ ((row>>1)&7)
    v_xor_b32 v10, v3, v1
    v_and_b32 v10, 7, v10
    v_lshrrev_b32 v11, 3, v1         ; row8
    v_lshlrev_b32 v11, 12, v11
    v_lshl_add_u32 v6, v10, 4, v11
    v_xor_b32 v7, 64, v6
    v_add_u32 v7, 0x8000, v7         ; + 8 rows
    s_lshl_b32 s35, s33, 18          ; tb*64*4096
    v_add_u32 v6, s35, v6
    v_add_u32 v7, s35, v7
    v_lshrrev_b32 v11, 1, v2
    v_xor_b32 v11, v11, v3
    v_lshlrev_b32 v11, 4, v11
    v_lshl_add_u32 v11, v2, 7, v11
    ''')
    k(f's_lshl_b32 s60, s30, 14')
    if lds_base: k(f's_add_u32 s60, s60, {lds_base}')
    k('v_add_u32 v12, s60, v11')
    k('v_xor_b32 v13, 64, v12')
    if lead:
        k('s_add_u32 s66, s33, s34')
        k('s_add_u32 s66, s66, s30')
        k('s_and_b32 s66, s66, 3')
    else:
        k('s_mov_b32 s66, s30')
    for j in range(4):
        k(f's_xor_b32 s36, s30, {j}')
        k(f's_lshl_b32 s36, s36, 16')
        k(f's_lshl_b32 s37, s66, 7')
        k(f's_add_u32 s{62+j}, s36, s37')
    k('s_mul_i32 s38, s66, 114688')
    k('s_mul_i32 s39, s34, 7168')
    k('s_add_u32 s38, s38, s39')
    k('s_and_b32 s67, s34, 1')
    k('s_lshl_b32 s39, s67, 10')
    k('s_add_u32 s38, s38, s39')
    k('s_mul_i32 s68, s67, 7168')
    k('s_add_u32 s61, s34, s33')
    if lead:
        k('s_cmp_eq_u32 s30, 0')
        k(f's_cselect_b32 s61, 0, {8-lead}')
    def phase(p, sd):
        if rot == 0: return [f's_mov_b32 s{sd}, {p}']
        o = [f's_add_u32 s{sd}, s61, {p % rot}', f's_and_b32 s{sd}, s{sd}, {rot-1}']
        if p // rot: o.append(f's_add_u32 s{sd}, s{sd}, {(p//rot)*rot}')
        return o
    def dma_pre(B):
        return phase(B, 41) + ['s_lshl_b32 s41, s41, 9']
    def dma_item(B, i):
        j, h = i // 2, i % 2
        o = [f's_add_u32 m0, s60, {(B%2)*8192 + j*2048 + h*1024}']
        o.append(f's_add_u32 s42, s41, s{62+j}' if h == 0 else 's_nop 0')
        o.append(f'buffer_load_dwordx4 v{6+h}, s[8:11], s42 offen {wflags} lds')
        return o
    def zl_pre(q):
        out = phase(q//2, 40)
        out.append(f's_mul_i32 s40, s40, {8*57344}')
        out.append('s_add_u32 s40, s40, s38')
        if q % 2: out.append('s_add_u32 s40, s40, 57344')
        out.append('s_sub_u32 s69, s40, s68')
        return out
    def zl_item(q, ft):
        return [f'buffer_load_dwordx4 {vr(zf(q%3,ft),4)}, v{4 + ft//4}, s[12:15], s{69 if ft == 6 else 40} offen offset:{(ft%4)*1024} {zflags}']
    def rd(q):
        B, h = q // 2, q % 2
        return [f'ds_read_b128 {vr(wf(q%2,j),4)}, v{12+h} offset:{(B%2)*8192 + j*2048}' for j in range(4)]
    Z1R = [244, 246, 248, 250, 252, 254, 14]
    BREG = 11
    def epi_loads():
        k('s_lshl_b32 s41, s33, 2')
        k('s_add_u32 s41, s41, s30')
        k('s_mul_i32 s42, s41, 28672')
        k('s_mul_i32 s43, s34, 7')
        k('s_add_u32 s43, s43, s67')
        k('s_lshl_b32 s43, s43, 9')
        k('s_add_u32 s50, s42, s43')
        k('s_mul_i32 s44, s67, 4088')
        k('s_add_u32 s51, s50, 3072')
        k('s_sub_u32 s51, s51, s44')
        for i in range(3):
            k(f'buffer_load_dwordx4 {vr(Z1R[2*i],4)}, v4, s[16:19], s50 offen offset:{i*1024} {zflags}')
        k(f'buffer_load_dwordx2 {vr(Z1R[6],2)}, v4, s[16:19], s51 offen {zflags}')
        k('s_lshl_b32 s46, s41, 5')
        k('v_lshlrev_b32 v10, 1, v2')
        k(f'buffer_load_ushort v{BREG}, v10, s[24:27], s46 offen')
        k('s_mov_b32 s49, 0xffff0000')
        k(f's_mov_b32 s47, {f32(GC1)}')
        k(f'v_mov_b32 v3, {f32(GC2)}')
    def gelu_ops(z):
        return [f'v_lshlrev_b32 v0, 16, v{z}', f'v_and_b32 v1, s49, v{z}',
                'v_mul_f32 v8, v0, v0', 'v_mul_f32 v9, v1, v1', 'v_fma_f32 v8, v8, v3, s47', 'v_fma_f32 v9, v9, v3, s47',
                'v_mul_f32 v8, v8, v0', 'v_mul_f32 v9, v9, v1', 'v_exp_f32 v8, v8', 'v_exp_f32 v9, v9', None,
                'v_add_f32 v8, 1.0, v8', 'v_add_f32 v9, 1.0, v9', 'v_rcp_f32 v8, v8', 'v_rcp_f32 v9, v9', None,
                'v_mul_f32 v0, v0, v8', 'v_mul_f32 v1, v1, v9', f'v_cvt_pk_bf16_f32 v{z}, v0, v1']
    seq = []
    def issue(tag, lines, n):
        for l in lines: k(l)
        seq.append((tag, n))
    def wait_for(tag):
        idx = max(i for i, (t, n) in enumerate(seq) if t == tag)
        k(f's_waitcnt vmcnt({sum(n for t, n in seq[idx+1:])})')
    def full_dma(B):
        for l in dma_pre(B): k(l)
        for i in range(8): issue(f'D{B}', dma_item(B, i), 1)
    def full_z(q):
        for l in zl_pre(q): k(l)
        for ft in range(7): issue(f'Z{q}_{ft}', zl_item(q, ft), 1)
    if full:
        zflags = 'sc1'
        handoff_gemm(k, dbg=stamps is not None, mid=lambda: (full_dma(0), full_dma(1)))
        if stamps is not None:
            k('s_memtime s[48:49]')
            k('s_waitcnt lgkmcnt(0)')
            k('s_mov_b32 s58, s48')
            stamps.append(58)
        full_z(0); full_z(1)
    else:
        full_dma(0); full_z(0); full_z(1)
        full_dma(1)
    if not no_epi:
        epi_loads(); seq.append(('E', 5))
    full_z(2)
    if not fused: stamp(0)
    wait_for('D0')
    if not fused: stamp(1)
    k('s_waitcnt lgkmcnt(0)')
    for l in rd(0): k(l)
    NQ = 16
    for q in range(NQ):
        if q % 2 == 1 and q + 1 < NQ: wait_for(f'D{(q+1)//2}')
        if q + 1 < NQ:
            for l in rd(q+1): k(l)
            k('s_waitcnt lgkmcnt(4)')
        else:
            k('s_waitcnt lgkmcnt(0)')
        doD = (q % 2 == 1 and (q+3)//2 < 8)
        doZ = q + 3 < NQ
        if doD:
            for l in dma_pre((q+3)//2): k(l)
        if doZ:
            for l in zl_pre(q+3): k(l)
        if q == 2 and not no_epi: wait_for('E')
        go = gelu_ops(Z1R[(q-2)//2] + (q-2) % 2) if (2 <= q and not no_epi) else []
        b = q % 3
        last = q == NQ-1
        order = [(ft, j) for ft in range(7) for j in range(4)] if not last else [(ft, j) for j in (3, 1, 2, 0) for ft in range(7)]
        if last:
            wait_for(f'Z{q}_6')
            k(f'v_add_u32 v10, s60, v4')
        for n, (ft, j) in enumerate(order):
            if not last and j == 0: wait_for(f'Z{q}_{ft}')
            c = '0' if q == 0 else vr(acc(ft,j),4)
            k(f'v_mfma_f32_16x16x32_bf16 {vr(acc(ft,j),4)}, {vr(zf(b,ft),4)}, {vr(wf(q%2,j),4)}, {c}')
            if go:
                o = go.pop(0)
                if o: k(o)
            if last and not no_epi and n >= 8 and n - 8 < 14:
                m = n - 8
                k(f'ds_write_b128 v10, {vr(acc(m%7, (3,1)[m//7]),4)} offset:{m*1024}')
            if doD and j == 1: issue(f'D{(q+3)//2}', dma_item((q+3)//2, ft), 1)
            if doD and n == 27: issue(f'D{(q+3)//2}', dma_item((q+3)//2, 7), 1)
            if doZ and j == 3: issue(f'Z{q+3}_{ft}', zl_item(q+3, ft), 1)
        if q == 7: stamp(2)
        if fused and q == cbar and not full: k('s_barrier')
    stamp(3)
    if no_epi: return
    T = ZB + 28
    k(f's_xor_b32 s48, s60, 0x4000')
    k(f's_xor_b32 s47, s60, 0xc000')
    k(f'v_add_u32 v12, s48, v4')
    k(f'v_add_u32 v13, s47, v4')
    k(f'v_lshlrev_b32 v{BREG}, 16, v{BREG}')
    k('s_waitcnt lgkmcnt(0)')
    k('s_barrier')
    for i in range(14):
        k(f'ds_read_b128 {vr(T+4*i,4)}, v12 offset:{i*1024}')
    for ft in range(7):
        k(f's_waitcnt lgkmcnt({13})' if ft == 0 else f's_waitcnt lgkmcnt(13)')
        for r in range(4):
            k(f'v_add_f32 v{acc(ft,2)+r}, v{acc(ft,2)+r}, v{T+4*ft+r}')
        k(f'ds_write_b128 v12, {vr(acc(ft,2),4)} offset:{ft*1024}')
    k('s_waitcnt lgkmcnt(0)')
    k('s_barrier')
    T2 = ZB
    for ft in range(7):
        k(f'ds_read_b128 {vr(T2+4*ft,4)}, v13 offset:{ft*1024}')
    for ft in range(7):
        for r in range(4):
            k(f'v_add_f32 v{acc(ft,0)+r}, v{acc(ft,0)+r}, v{T+4*(7+ft)+r}')
            k(f'v_add_f32 v{acc(ft,0)+r}, v{acc(ft,0)+r}, v{BREG}')
    for ft in range(7):
        a = acc(ft, 0)
        k(f's_waitcnt lgkmcnt({6-ft})')
        for r in range(4):
            k(f'v_add_f32 v{a+r}, v{a+r}, v{T2+4*ft+r}')
        for h in range(2):
            z = Z1R[ft] + h
            k(f'v_lshlrev_b32 v0, 16, v{z}')
            k(f'v_and_b32 v1, s49, v{z}')
            k(f'v_mul_f32 v0, v0, v{a+2*h}')
            k(f'v_mul_f32 v1, v1, v{a+2*h+1}')
            k(f'v_cvt_pk_bf16_f32 v{z}, v0, v1')
        sf = 'sc1' if fused else ''
        if ft == 6 and fused:
            k('v_lshrrev_b32 v0, 1, v4')
            k('s_mul_i32 s44, s67, 504')
            k('s_add_u32 s51, s51, s44')
            k(f'buffer_store_dwordx2 {vr(Z1R[ft],2)}, v0, s[20:23], s51 offen {sf}')
        elif ft == 6: k(f'buffer_store_dwordx2 {vr(Z1R[ft],2)}, v4, s[20:23], s51 offen {sf}')
        elif ft % 2: k(f'buffer_store_dwordx4 {vr(Z1R[ft-1],4)}, v4, s[20:23], s50 offen offset:{(ft//2)*1024} {sf}')
    stamp(4)
    if not fused: return
    k.srd(8, 28, WS['FLG'][1], WS['FLG'][0])
    k.srd(16, 28, WS['Y2T'][1], WS['Y2T'][0])
    k.srd(12, 28, WS['ST1'][1], WS['ST1'][0])
    k.srd(24, 84, NBYTES['q'])
    k.srd(36, 86, NBYTES['out'])
    k('''v_lshrrev_b32 v2, 4, v4          ; lane
    v_lshrrev_b32 v6, 3, v2          ; l/8
    v_and_b32 v7, 7, v2              ; l%8
    v_mul_u32_u24 v9, 896, v6
    v_lshl_add_u32 v9, v7, 4, v9
    s_lshl_b32 s43, s33, 6
    s_lshl_b32 s44, s30, 4
    s_add_u32 s43, s43, s44          ; row0
    s_mul_i32 s44, s43, 896
    s_lshl_b32 s45, s34, 7
    s_add_u32 s44, s44, s45          ; soffset h=0
    s_add_u32 s45, s44, 7168         ; h=1
    s_lshl_b32 s46, s43, 3
    v_lshlrev_b32 v10, 3, v6
    s_lshl_b32 s40, s33, 12
    s_lshl_b32 s41, s34, 9
    s_add_u32 s40, s40, s41
    s_lshl_b32 s41, s30, 7
    s_add_u32 s40, s40, s41
    s_add_u32 s40, s40, 8192
    v_lshlrev_b32 v0, 2, v2
    v_mov_b32 v1, s59
    s_waitcnt vmcnt(0)
    s_mov_b32 exec_hi, 0
    buffer_store_dword v1, v0, s[8:11], s40 offen sc1
    s_mov_b64 exec, -1
    ''')
    stamp(0)
    stamp(1)
    k('s_cmp_eq_u32 s34, 7')
    k(f's_cbranch_scc1 {endlabel}')
    k('''buffer_load_dwordx4 v[12:15], v9, s[24:27], s44 offen
    buffer_load_dwordx4 v[16:19], v9, s[24:27], s45 offen
    buffer_load_dwordx2 v[20:21], v10, s[12:15], s46 offen sc1
    buffer_load_dwordx2 v[22:23], v10, s[12:15], s46 offen offset:64 sc1
    v_lshlrev_b32 v8, 2, v2
    v_lshlrev_b32 v11, 3, v2
    s_lshl_b32 s41, s34, 9
    s_add_u32 s41, s41, 4096
    ''')
    lp, ok = k.label('cvpoll'), k.label('cvok')
    k(f's_mov_b32 s42, {SPIN_MAX}')
    k(f'{lp}:')
    k('buffer_load_dwordx2 v[30:31], v11, s[8:11], s41 offen sc1')
    k('s_sub_u32 s42, s42, 1')
    k('s_waitcnt vmcnt(0)')
    k('v_xor_b32 v30, v30, v1')
    k('v_xor_b32 v31, v31, v1')
    k('v_or_b32 v30, v30, v31')
    k('v_cmp_ne_u32 vcc, 0, v30')
    k('s_cmp_eq_u32 s42, 0')
    k(f's_cbranch_scc1 {ok}')
    k('s_nop 2')
    k(f's_cbranch_vccz {ok}')
    k('s_sleep 2')
    k(f's_branch {lp}')
    k(f'{ok}:')
    k(f'''; y2 tile DMA (private): rows d = 32i + l/2, chunk l%2 ; src = (64cb + d)*4096 + (64tb+16w)*2 + (l%2)*16
    v_lshrrev_b32 v8, 1, v2
    v_lshlrev_b32 v8, 12, v8
    v_and_b32 v3, 1, v2
    v_lshl_add_u32 v8, v3, 4, v8
    s_lshl_b32 s40, s34, 18
    s_lshl_b32 s41, s43, 1
    s_add_u32 s40, s40, s41
    s_add_u32 s41, s40, 0x20000
    s_lshl_b32 s42, s30, 11
    s_add_u32 s42, s42, {YT}
    s_mov_b32 m0, s42
    s_nop 0
    buffer_load_dwordx4 v8, s[16:19], s40 offen sc1 lds
    s_add_u32 m0, s42, 1024
    s_nop 0
    buffer_load_dwordx4 v8, s[16:19], s41 offen sc1 lds
    v_lshlrev_b32 v24, 3, v2
    v_add_u32 v24, s42, v24
    v_and_b32 v25, 15, v2
    v_mul_u32_u24 v25, 144, v25
    v_lshrrev_b32 v3, 4, v2
    v_lshl_add_u32 v25, v3, 3, v25
    s_mul_i32 s48, s30, 2304
    s_add_u32 s48, s48, {TR}
    v_add_u32 v25, s48, v25
    v_mul_u32_u24 v26, 144, v6
    v_lshl_add_u32 v26, v7, 4, v26
    v_add_u32 v26, s48, v26
    v_lshrrev_b32 v27, 1, v7
    v_lshlrev_b32 v27, 10, v27
    v_and_b32 v28, 1, v7
    v_lshl_add_u32 v27, v28, 9, v27
    s_lshl_b32 s48, s30, 12
    s_add_u32 s48, s48, 0x10000
    v_add_u32 v27, s48, v27
    v_lshl_add_u32 v28, v7, 1, v6
    v_and_b32 v28, 15, v28
    v_lshlrev_b32 v28, 4, v28
    v_xor_b32 v30, 0x80, v28         ; +8 mod 16
    v_add_u32 v30, v30, v27          ; h=1
    v_add_u32 v27, v28, v27          ; h=0
    s_mov_b32 s50, {f32(-1.4426950408889634)}
    s_mov_b32 s51, {f32(-1.4426950408889634)}
    s_mov_b32 s52, 1.0
    s_mov_b32 s53, 1.0
    ''')
    X = 40; S = 56
    for h in range(2):
        for d in range(4):
            k(f'v_lshlrev_b32 v{X+8*h+2*d}, 16, v{12+4*h+d}')
            k(f'v_and_b32 v{X+8*h+2*d+1}, s49, v{12+4*h+d}')
    k('s_waitcnt vmcnt(0)')
    for i in range(4): k(f'ds_read_b64_tr_b16 v[{32+2*i}:{33+2*i}], v24 offset:{i*512}')
    for i in range(4):
        k(f's_waitcnt lgkmcnt(3)')
        k(f'ds_write_b64 v25, v[{32+2*i}:{33+2*i}] offset:{i*32}')
    k('s_waitcnt lgkmcnt(0)')
    k('ds_read_b128 v[32:35], v26')
    k(f'ds_read_b128 v[36:39], v26 offset:{8*144}')
    k('s_waitcnt lgkmcnt(0)')
    for h in range(2):
        m, r = 20+2*h, 21+2*h
        for d in range(4):
            k(f'v_lshlrev_b32 v28, 16, v{32+4*h+d}')
            k(f'v_and_b32 v29, s49, v{32+4*h+d}')
            for e in range(2):
                sx = S+8*h+2*d+e
                k(f'v_sub_f32 v{sx}, v{X+8*h+2*d+e}, v{m}')
                k(f'v_mul_f32 v{sx}, v{sx}, v{r}')
                k(f'v_mul_f32 v{sx}, v{sx}, v{28+e}')
    if stamps is not None:
        k('s_memtime s[72:73]')
        k('s_waitcnt lgkmcnt(0)')
    k('s_barrier')
    R = 72
    for h in range(2):
        for p in range(4):
            for gg in range(2):
                k(f'ds_read_b128 {vr(R + ((h*4+p)*2+gg)*4, 4)}, v{30 if h else 27} offset:{p*16384 + gg*256}')
    for h in range(2):
        k(f's_waitcnt lgkmcnt({8 if h == 0 else 0})')
        b = R + h*32
        P = range(4)
        for d in P:
            k(f'v_pk_add_f32 {vr(b+2*d,2)}, {vr(b+2*d,2)}, {vr(b+8+2*d,2)}')
            k(f'v_pk_add_f32 {vr(b+16+2*d,2)}, {vr(b+16+2*d,2)}, {vr(b+24+2*d,2)}')
        for d in P: k(f'v_pk_add_f32 {vr(b+2*d,2)}, {vr(b+2*d,2)}, {vr(b+16+2*d,2)}')
        for d in P: k(f'v_pk_mul_f32 {vr(b+8+2*d,2)}, {vr(b+2*d,2)}, s[50:51]')
        for e in range(8): k(f'v_exp_f32 v{b+8+e}, v{b+8+e}')
        for d in P: k(f'v_pk_mul_f32 {vr(b+2*d,2)}, {vr(b+2*d,2)}, {vr(S+8*h+2*d,2)}')
        for d in P: k(f'v_pk_add_f32 {vr(b+8+2*d,2)}, {vr(b+8+2*d,2)}, s[52:53]')
        for e in range(8): k(f'v_rcp_f32 v{b+8+e}, v{b+8+e}')
        k('s_nop 0')
        for d in P: k(f'v_pk_fma_f32 {vr(b+2*d,2)}, {vr(b+2*d,2)}, {vr(b+8+2*d,2)}, {vr(X+8*h+2*d,2)}')
        for d in P: k(f'v_cvt_pk_bf16_f32 v{b+16+d}, v{b+2*d}, v{b+2*d+1}')
        k(f'buffer_store_dwordx4 {vr(b+16,4)}, v9, s[36:39], s{44+h} offen')

def gen_gemm3_helper(k, stamps=None, psleep=3, full=False):
    from k1 import Seq
    def stamp(i):
        if stamps is not None:
            k(f's_memtime s[{70+2*i}:{71+2*i}]')
            k('s_waitcnt lgkmcnt(0)')
            stamps.append(70+2*i)
    k.srd(8, 28, WS['PF'][1], WS['PF'][0])
    k.srd(12, 28, WS['WOF'][1], WS['WOF'][0])
    k.srd(16, 28, WS['FLG'][1], WS['FLG'][0])
    k('''v_and_b32 v2, 63, v0
    v_lshlrev_b32 v4, 4, v2
    v_add_u32 v5, 0x1000, v4
    s_mul_i32 s47, s30, 7168
    ''')
    for i in range(4):
        k(f's_lshl_b32 s48, s34, 2')
        k(f's_add_u32 s48, s48, {i}')
        k(f's_mul_i32 s48, s48, 28672')
        k(f's_add_u32 s{50+i}, s48, s47')
        k(f's_lshl_b32 s48, s33, 2')
        k(f's_add_u32 s48, s48, {i}')
        k(f's_mul_i32 s48, s48, 28672')
        k(f's_add_u32 s{54+i}, s48, s47')
    k('''s_lshl_b32 s48, s30, 14
    s_add_u32 s48, s48, 0x10000
    v_and_b32 v6, 0x300, v4          ; g*256
    v_add_u32 v6, s48, v6
    v_lshrrev_b32 v3, 5, v2          ; g>>1
    v_lshl_add_u32 v3, v3, 1, v2     ; l + 2*(g>>1)
    v_and_b32 v1, 15, v3
    v_lshl_add_u32 v248, v1, 4, v6
    v_add_u32 v3, 4, v3
    v_and_b32 v1, 15, v3
    v_lshl_add_u32 v249, v1, 4, v6
    v_add_u32 v3, 4, v3
    v_and_b32 v1, 15, v3
    v_lshl_add_u32 v250, v1, 4, v6
    v_add_u32 v3, 4, v3
    v_and_b32 v1, 15, v3
    v_lshl_add_u32 v251, v1, 4, v6
    v_and_b32 v7, 7, v2
    v_lshlrev_b32 v7, 7, v7
    s_lshl_b32 s40, s33, 12
    s_lshl_b32 s41, s30, 10
    s_add_u32 s40, s40, s41
    s_add_u32 s40, s40, 8192
    v_mov_b32 v1, s59
    ''')
    ACC = 8; WBs = 72; PB = 184; NBUF = 4
    def acc(i, j): return ACC + (i*4+j)*4
    def wf(q, i): return WBs + q*16 + i*4
    def pf(q, j): return PB + (q % NBUF)*16 + j*4
    wl = [f'buffer_load_dwordx4 {vr(wf(q,i),4)}, v{4+q//4}, s[12:15], s{50+i} offen offset:{(q%4)*1024} {"sc1" if full else ""}' for q in range(7) for i in range(4)]
    if full:
        k('''v_min_u32 v8, 6, v2
        v_mul_u32_u24 v8, 7, v8
        s_mul_i32 s41, s30, 49
        s_add_u32 s41, s41, s34
        v_add_u32 v8, s41, v8            ; u
        v_mul_u32_u24 v9, 4682, v8
        v_lshrrev_b32 v9, 16, v9         ; rb
        v_mul_u32_u24 v10, 14, v9
        v_sub_u32 v10, v8, v10           ; cb1
        v_lshl_add_u32 v8, v10, 4, v9
        v_lshlrev_b32 v8, 7, v8
        s_mov_b32 s41, 139264
        s_mov_b64 exec, 0x7f
        ''')
        poll_flags(k, 12, 8, 16, 's41', 1, 8, cnt=42)
    k('s_mov_b64 exec, 0xff')
    k('buffer_load_dword v3, v7, s[16:19], s40 offen sc1')
    k('s_mov_b64 exec, -1')
    stamp(0)
    k('s_barrier')
    stamp(1)
    for l in wl[:6]: k(l)
    k('s_barrier')
    for l in wl[6:]: k(l)
    if stamps is not None:
        k('s_waitcnt vmcnt(0)')
        k('s_memtime s[70:71]')
        k('s_waitcnt lgkmcnt(0)')
    lp, ok = k.label('ppoll'), k.label('pok')
    k(f's_mov_b32 s42, {SPIN_MAX}')
    k('s_mov_b64 exec, 0xff')
    k(f'{lp}:')
    k('buffer_load_dword v3, v7, s[16:19], s40 offen sc1')
    k('s_sub_u32 s42, s42, 1')
    k('s_waitcnt vmcnt(0)')
    k('v_cmp_ne_u32 vcc, v3, v1')
    k('s_cmp_eq_u32 s42, 0')
    k(f's_cbranch_scc1 {ok}')
    k('s_nop 2')
    k(f's_cbranch_vccz {ok}')
    k(f's_sleep {psleep}')
    k(f's_branch {lp}')
    k(f'{ok}:')
    k('s_mov_b64 exec, -1')
    stamp(2)
    Q = Seq(k)
    def items(q):
        if q == 3:
            return [(f'L{q}', [f'buffer_load_dwordx2 {vr(pf(q,j),2)}, v3, s[8:11], s{54+j} offen offset:3072 sc1',
                               f'buffer_load_dwordx2 {vr(pf(q,j)+2,2)}, v3, s[8:11], s{54+j} offen offset:3584 sc1']) for j in range(4)]
        return [(f'L{q}', [f'buffer_load_dwordx4 {vr(pf(q,j),4)}, v{4+q//4}, s[8:11], s{54+j} offen offset:{(q%4)*1024} sc1']) for j in range(4)]
    k('v_lshrrev_b32 v3, 1, v4')
    for q in range(NBUF):
        for t, l in items(q): Q.issue(t, l, len(l))
    for q in range(7):
        Q.wait_for(f'L{q}')
        pend = items(q+NBUF) if q + NBUF < 7 else []
        n = 0
        for j in range(4):
            for i in range(4):
                c = '0' if q == 0 else vr(acc(i,j),4)
                k(f'v_mfma_f32_16x16x32_bf16 {vr(acc(i,j),4)}, {vr(wf(q,i),4)}, {vr(pf(q,j),4)}, {c}')
                if q == 6 and n >= 8:
                    m = n - 8
                    k(f'ds_write_b128 v{248 + m%4}, {vr(acc(m%4, m//4),4)} offset:{m*1024}')
                n += 1
            if pend:
                t, l = pend.pop(0); Q.issue(t, l, len(l))
    k('s_nop 4')
    for m in range(8, 16):
        k(f'ds_write_b128 v{248 + m%4}, {vr(acc(m%4, m//4),4)} offset:{m*1024}')
    stamp(3)
    k('s_waitcnt lgkmcnt(0)')
    k('s_barrier')

def gen_k2_only(name='k2_kernel', kidx=0, **kw):
    k = Kern(name)
    stamp_begin(k)
    k('s_cmp_ge_u32 s2, 256')
    k(f's_cbranch_scc1 {name}_end')
    k(f's_load_dwordx2 s[4:5], s[0:1], {KA["w_sp"]}')
    k(f's_load_dwordx2 s[6:7], s[0:1], {KA["b_sp"]}')
    k(f's_load_dwordx2 s[28:29], s[0:1], {KA["ws"]}')
    k('v_lshrrev_b32 v1, 6, v0')
    k('s_nop 0')
    k('v_readfirstlane_b32 s30, v1')
    k('s_waitcnt lgkmcnt(0)')
    st = []
    gen_gemm2_body(k, stamps=st, **kw)
    stamp_end(k, kidx, 28, 30, extra=st)
    k(f'{name}_end:')
    k('s_endpgm')
    return k

if __name__ == '__main__':
    ks = []
    for rot in (0, 8):
        for nm, kw in [('full', {}), ('noepi', dict(no_epi=True)), ('nomfma', dict(no_epi=True, no_mfma=True))]:
            ks.append(gen_k2_only(f'k2{nm}_r{rot}_kernel', kidx=len(ks), rot=rot, **kw))
    build_file('k2.s', [(k.name, 256, 256, 65536) for k in ks], [k.text(256) for k in ks])
```
